```python
import torch

def _softmax(x, axis=-1):
    return torch.softmax(x, dim=axis)

def _gelu(x):
    return torch.nn.functional.gelu(x, approximate='tanh')

def _silu(x):
    return torch.nn.functional.silu(x)

def _sigmoid(x):
    return torch.sigmoid(x)

def _layernorm(x, axis=-1, eps=1e-05):
    m = x.mean(dim=axis, keepdim=True)
    v = x.var(dim=axis, keepdim=True, unbiased=False)
    return (x - m) / torch.sqrt(v + eps)

def _scatter_add(tgt, idx, src, axis=0):
    return tgt.clone().index_add_(axis, idx, src)

def _segment_sum(src, seg, n):
    out = torch.zeros((n,) + src.shape[1:], dtype=src.dtype)
    return out.index_add_(0, seg, src)

def _pad(x, pw):
    flat = tuple((v for pair in reversed(pw) for v in pair))
    return torch.nn.functional.pad(x, flat)
kernel_name = 'adaLN_cond__sliding_block_cached__glu_gated_glu__decode'

def setup_inputs():

    _w = lambda a: (lambda t: t.to(torch.bfloat16) if t.is_floating_point() else t)(torch.as_tensor(a))

    def _A_setup():
        B, Sq, D = (8, 1, 448)
        Hq, Hkv, Sk, Dh = (16, 8, 8192, 256)
        assert Hq % Hkv == 0, (Hq, Hkv)
        return {'x': _w((lambda *s: torch.randn(*s, dtype=torch.bfloat16) * 0.05)(B, Sq, D)), 'k_cache': _w((lambda *s: torch.randn(*s, dtype=torch.bfloat16) * 3.2)(B, Hkv, Sk, Dh)), 'v_cache': _w((lambda *s: torch.randn(*s, dtype=torch.bfloat16) * 0.4)(B, Hkv, Sk, Dh)), 'wq': _w((lambda *s: torch.randn(*s, dtype=torch.bfloat16) * 3.2)(D, Hq * Dh) * D ** (-0.5)), 'wo': _w((lambda *s: torch.randn(*s, dtype=torch.bfloat16) * 0.4)(Hq * Dh, D) * (Hq * Dh) ** (-0.5))}
    _A_in = _A_setup()

    def _B_setup():
        B, S, D, F = (8, 1, 448, 1792)
        return {'x': _w((lambda *s: torch.randn(*s, dtype=torch.bfloat16) * 0.05)(B, S, D)), 'w_gate': _w((lambda *s: torch.randn(*s, dtype=torch.bfloat16) * 0.05)(D, F)), 'w_up': _w((lambda *s: torch.randn(*s, dtype=torch.bfloat16) * 0.05)(D, F)), 'w_down': _w((lambda *s: torch.randn(*s, dtype=torch.bfloat16) * 0.05)(F, D))}
    _B_in = _B_setup()
    return {'A_x': _A_in['x'], 'A_k_cache': _A_in['k_cache'], 'A_v_cache': _A_in['v_cache'], 'A_wq': _A_in['wq'], 'A_wo': _A_in['wo'], 'B_x': _B_in['x'], 'B_w_gate': _B_in['w_gate'], 'B_w_up': _B_in['w_up'], 'B_w_down': _B_in['w_down'], 'c': _w((lambda *s: torch.randn(*s, dtype=torch.bfloat16) * 0.1)(8, 448) * 8.0), 'w_mod': _w((lambda *s: torch.randn(*s, dtype=torch.bfloat16) * 0.1)(448, 6 * 448) * 448 ** (-0.5) * 8.0)}

def reference(A_x, A_k_cache, A_v_cache, A_wq, A_wo, B_x, B_w_gate, B_w_up, B_w_down, c, w_mod):

    def _A_ref(x, k_cache, v_cache, wq, wo):
        B, Sq, D = x.shape
        Hq, Dh = (16, 256)
        Hkv, Sk = (k_cache.shape[1], k_cache.shape[2])
        W = min(4096, max(256, Sk // 4))
        rep = Hq // Hkv
        q = (lambda x, *d: x.permute(*d))((x @ wq).reshape(B, Sq, Hq, Dh), 0, 2, 1, 3)
        k = (lambda x, n, axis: torch.repeat_interleave(x, n, dim=axis))(k_cache[:, :, Sk - W:, :], rep, axis=1)
        v = (lambda x, n, axis: torch.repeat_interleave(x, n, dim=axis))(v_cache[:, :, Sk - W:, :], rep, axis=1)
        scores = torch.einsum('bhqd,bhkd->bhqk', q, k) * Dh ** (-0.5)
        p = _softmax(scores, axis=-1)
        o = torch.einsum('bhqk,bhkd->bhqd', p, v)
        return (lambda x, *d: x.permute(*d))(o, 0, 2, 1, 3).reshape(B, Sq, Hq * Dh) @ wo

    def _B_ref(x, w_gate, w_up, w_down):
        g = torch.einsum('bsd,df->bsf', x, w_gate)
        u = torch.einsum('bsd,df->bsf', x, w_up)
        h = _sigmoid(g) * u
        return torch.einsum('bsf,fd->bsd', h, w_down)
    x = A_x
    mod = (_silu(c) @ w_mod).reshape(c.shape[0], 6, 1, -1)
    sa, ca, ga, sb, cb, gb = (mod[:, 0].clone(), mod[:, 1].clone(), mod[:, 2].clone(), mod[:, 3].clone(), mod[:, 4].clone(), mod[:, 5].clone())
    h = _layernorm(x, axis=-1) * (1 + ca) + sa
    x = x + ga * _A_ref(h, A_k_cache, A_v_cache, A_wq, A_wo)
    h = _layernorm(x, axis=-1) * (1 + cb) + sb
    x = x + gb * _B_ref(h, B_w_gate, B_w_up, B_w_down)
    return x
```

```python
import re

def regs_of(tok):
    tok = tok.strip()
    tok = re.sub(r"^-|^\||\|$|^abs\(|\)$", "", tok)
    m = re.fullmatch(r"([vsa])(\d+)", tok)
    if m: return {m.group(1) + m.group(2)}
    m = re.fullmatch(r"([vsa])\[(\d+):(\d+)\]", tok)
    if m: return {m.group(1) + str(i) for i in range(int(m.group(2)), int(m.group(3)) + 1)}
    if tok in ("vcc", "vcc_lo", "vcc_hi"): return {"vcc"}
    if tok in ("exec", "exec_lo", "exec_hi"): return {"exec"}
    if tok == "m0": return {"m0"}
    return set()

TRANS = ("v_exp_f32", "v_log_f32", "v_rcp_f32", "v_rsq_f32", "v_sqrt_f32", "v_sin_f32", "v_cos_f32")

class Ins:
    def __init__(self, text):
        self.text = text
        t = text.split(";")[0].strip()
        parts = t.split(None, 1)
        self.op = parts[0]
        rest = parts[1] if len(parts) > 1 else ""
        toks = [x.strip() for x in rest.split(",")] if rest else []
        mods = ""
        if toks:
            last = toks[-1].split(None, 1)
        m = re.search(r"\s(offen|idxen|offset:|offset0:|row_|quad_perm|bank_mask|sc0|sc1|nt\b|lds\b|bound_ctrl|op_sel|glc|wave_|cbsz|abid|blgp|neg_|clamp|off\b)", " " + rest)
        if m:
            cut = m.start()
            mods = (" " + rest)[cut:]
            rest = (" " + rest)[:cut]
        self.mods = mods
        self.ops = [x.strip() for x in rest.split(",") if x.strip()]
        self.w = set(); self.r = set()
        op = self.op
        self.cls = "other"
        self.dpp = ("row_" in mods and ("row_ror" in mods or "row_sh" in mods or "row_bcast" in mods or "row_newbcast" in mods or "row_mirror" in mods or "row_half" in mods)) or "quad_perm" in mods
        R = lambda i: regs_of(self.ops[i]) if i < len(self.ops) else set()
        allr = lambda a: set().union(*[regs_of(x) for x in self.ops[a:]]) if len(self.ops) > a else set()
        if op.startswith("v_mfma"):
            self.cls = "mfma"; self.w = R(0); self.ab = R(1) | R(2); self.c = R(3); self.r = self.ab | self.c
        elif op.startswith("v_permlane") and "swap" in op:
            self.cls = "valu"; self.w = R(0) | R(1); self.r = R(0) | R(1); self.perml = True
        elif op.startswith("v_"):
            self.cls = "valu"
            self.w = R(0); self.r = allr(1)
            if op.startswith(("v_add_co", "v_sub_co", "v_addc_co", "v_subb_co")): self.w |= R(1); self.r = allr(2)
            if op.startswith(("v_fmac", "v_dot2c", "v_pk_fmac")) or self.dpp: self.r |= R(0)
            if op.startswith("v_cndmask") and len(self.ops) == 3: self.r |= {"vcc"}
        elif op.startswith(("buffer_", "global_")):
            self.cls = "vmem"
            if "load" in op and " lds" not in mods:
                self.w = R(0); self.r = allr(1)
            elif "atomic" in op and "sc0" in mods and op.startswith("global_"):
                self.w = R(0); self.r = allr(1)
            else:
                self.r = allr(0)
                if " lds" in mods: self.r |= {"m0"}
            self.wide_store = ("store" in op and ("x3" in op or "x4" in op))
            if self.wide_store: self.data = R(0) if op.startswith("buffer_") else R(1)
        elif op.startswith("ds_"):
            self.cls = "ds"
            if op.startswith(("ds_read", "ds_bpermute", "ds_permute", "ds_swizzle")) or "_rtn" in op:
                self.w = R(0); self.r = allr(1)
            else: self.r = allr(0)
        elif op.startswith("s_"):
            self.cls = "salu"
            if op.startswith(("s_cmp", "s_cbranch", "s_branch", "s_waitcnt", "s_nop", "s_barrier", "s_endpgm", "s_sleep", "s_setprio", "s_bitcmp")):
                self.r = allr(0)
            else:
                self.w = R(0); self.r = allr(1)
        self.states = 1
        if op == "s_nop": self.states = int(self.ops[0], 0) + 1

def need(prod, cons):
    n = 0
    vw = {x for x in prod.w if x[0] in "va" and x not in ("vcc",)}
    sw = {x for x in prod.w if x[0] == "s" or x == "vcc"}
    if prod.cls == "valu":
        if cons.cls == "valu" and cons.dpp and vw & cons.r: n = max(n, 2)
        if cons.cls == "mfma" and vw & cons.r: n = max(n, 2)
        if cons.cls == "valu" and getattr(cons, "perml", False) and vw & cons.r: n = max(n, 2)
        if cons.op.startswith(("v_readlane", "v_readfirstlane")) and vw & cons.r: n = max(n, 1)
        if cons.cls == "valu" and sw & cons.r: n = max(n, 4 if cons.op.startswith(("v_readlane", "v_writelane")) else 2)
        if cons.cls == "vmem" and sw & cons.r: n = max(n, 5)
        if cons.cls == "salu" and sw & cons.r: n = max(n, 1)
        if prod.op.startswith(TRANS) and cons.cls in ("valu", "mfma") and vw & cons.r: n = max(n, 1)
        if "exec" in prod.w and cons.cls in ("valu", "mfma"): n = max(n, 5)
    if prod.cls == "mfma":
        P = 4 if "16x16x32" in prod.op or "16x16x16" in prod.op else 8
        full = {4: 8, 8: 12}[P]
        if cons.cls == "mfma":
            if prod.w & cons.ab: n = max(n, full)
            if prod.w & cons.c and prod.w != cons.c: n = max(n, full - 2)
            if prod.w & cons.w and prod.w != cons.c: n = max(n, full)
        elif cons.cls in ("valu", "vmem", "ds"):
            if prod.w & (cons.r | cons.w): n = max(n, full)
        if cons.cls == "valu" and prod.c & cons.w: n = max(n, {4: 3, 8: 7}[P])
    if prod.cls == "salu" and "m0" in prod.w and cons.cls == "vmem" and "m0" in cons.r: n = max(n, 1)
    if prod.cls == "vmem" and getattr(prod, "wide_store", False):
        if cons.w & prod.data: n = max(n, 2)
    return n

class Asm:
    def __init__(self):
        self.out = []; self.hist = []; self.nlab = 0; self.vm = []; self.pads = 0
    def raw(self, s): self.out.append(s)
    def __call__(self, s):
        for line in s.strip("\n").split("\n"):
            line = line.strip()
            if not line or line.startswith(";"):
                if line: self.out.append("    " + line)
                continue
            if line.endswith(":"):
                self.out.append(line); continue
            ins = Ins(line)
            dist = 0; pad = 0
            for p in reversed(self.hist[-24:]):
                k = need(p, ins) - dist
                if k > pad: pad = k
                dist += p.states
                if dist >= 21: break
            while pad > 0:
                k = min(pad, 16); nop = Ins(f"s_nop {k-1}")
                self.out.append(f"    s_nop {k-1}"); self.hist.append(nop); pad -= k; self.pads += 1
            self.out.append("    " + line); self.hist.append(ins)
    def label(self, p="L"):
        self.nlab += 1; return f"{p}_{self.nlab}"
    def vm_reset(self): self.vm = []
    def vmem(self, s, tag=None):
        self(s); self.vm.append(tag)
    def vm_wait(self, tag):
        idx = max(i for i, t in enumerate(self.vm) if t == tag)
        n = len(self.vm) - 1 - idx
        self(f"s_waitcnt vmcnt({min(n,63)})")
    def vm_pace(self, d):
        self(f"s_waitcnt vmcnt({d-1})")
    def text(self): return "\n".join(self.out) + "\n"
```

```python
import struct, math, sys
from asm2 import Asm
NAME = "adaLN_cond__sliding_block_cached__glu_gated_glu__decode_kernel"
def f32(x): return "0x%08x" % struct.unpack("<I", struct.pack("<f", x))[0]

MOD_OFF, Q_OFF, SC_OFF, ST_OFF, PA_OFF, PD_OFF, TS_OFF = 0x0, 0x10000, 0x20000, 0xA0000, 0xB0000, 0x120000, 0x200000
FQ, FP, CRIT, KDONE, RC0, RC1, RC2, FC, MS, F0, XC = 0, 4, 8, 12, 16, 20, 24, 28, 32, 48, 52
OACC, GUACC, STL, X1L, XST, QL, MODL, XL, SCL, RED, GU = 0x80, 0x280, 0x480, 0x500, 0x500, 0xC00, 0x1000, 0x1E00, 0x2400, 0x4800, 0x8000
LDS_BYTES = 0x24000
W0, W1, W2 = 32, 64, 96
SPIN_MAX = 1 << 20

def gen(dk=3, dv=3, dv3=4, dw=2, diag=False, dry=True, pol="nt"):
    a = Asm()
    SELLO, SELHI, HIM, CEXP = "s64", "s65", "s66", "s67"
    def vr(b, n=4): return f"v[{b}:{b+n-1}]"
    def stamp(i):
        if diag: a(f"s_memrealtime s[{80+2*i}:{81+2*i}]")
    def srd(d, p, size):
        a(f"s_mov_b32 s{d}, s{p}\ns_mov_b32 s{d+1}, s{p+1}\ns_mov_b32 s{d+2}, {size}\ns_mov_b32 s{d+3}, 0x20000")
    def lds_spin(off, target, vt="v3", st="s30"):
        L = a.label("spin"); D = a.label("spind")
        a(f"""{L}:
        ds_read_b32 {vt}, v2 offset:{off}
        s_waitcnt lgkmcnt(0)
        v_readfirstlane_b32 {st}, {vt}
        s_cmp_ge_u32 {st}, {target}
        s_cbranch_scc1 {D}
        s_sleep 1
        s_branch {L}
        {D}:""")
    def lds_inc(off, vt="v3"):
        a(f"v_mov_b32 {vt}, 1\ns_mov_b64 exec, 1\nds_add_u32 v2, {vt} offset:{off}\ns_mov_b64 exec, -1")
    def unpack2(lo, hi, pk):
        a(f"v_lshlrev_b32 {lo}, 16, {pk}\nv_and_b32 {hi}, {HIM}, {pk}") if lo != pk else a(f"v_and_b32 {hi}, {HIM}, {pk}\nv_lshlrev_b32 {lo}, 16, {pk}")
    def round2(x, y, t):
        a(f"v_cvt_pk_bf16_f32 {t}, {x}, {y}"); unpack2(x, y, t)
    def round1(x):
        a(f"v_cvt_pk_bf16_f32 {x}, {x}, {x}\nv_lshlrev_b32 {x}, 16, {x}")
    def transpose_inplace(Wb, t0="v4", t1="v5"):
        P = lambda i, d: (f"v{Wb+8*i+d}", f"v{Wb+8*i+4+d}")
        for i in range(4):
            e, o = P(i, i)
            a(f"v_perm_b32 {t0}, {o}, {e}, {SELLO}\nv_perm_b32 {o}, {o}, {e}, {SELHI}\nv_mov_b32 {e}, {t0}")
            for d in range(i+1, 4):
                e, o = P(i, d); e2, o2 = P(d, i)
                a(f"""v_perm_b32 {t0}, {o}, {e}, {SELLO}
                v_perm_b32 {t1}, {o}, {e}, {SELHI}
                v_perm_b32 {e}, {o2}, {e2}, {SELLO}
                v_perm_b32 {o}, {o2}, {e2}, {SELHI}
                v_mov_b32 {e2}, {t0}
                v_mov_b32 {o2}, {t1}""")
    def block_voff(v, stride):
        a(f"v_lshrrev_b32 v3, 3, v0\nv_mul_u32_u24 v3, {8*stride}, v3\nv_and_b32 {v}, 7, v0\nv_lshl_add_u32 {v}, {v}, 4, v3")
    def load_block(dst, voff, sr, soff, stride, pace=None, tag=None, fill=None):
        for i in range(8):
            if pace: a.vm_pace(pace)
            a.vmem(f"buffer_load_dwordx4 {vr(dst+4*i)}, {voff}, s[{sr}:{sr+3}], {soff} offen {pol}", tag)
            if i < 7: a(f"s_add_u32 {soff}, {soff}, {stride}")
            if fill and i in fill: fill[i]()
    def dma_block(ldsbase_s, voff, sr, soff, stride, pace=None, tag=None, fill=None):
        for i in range(8):
            a(f"s_add_u32 m0, {ldsbase_s}, {i*1024}")
            if pace: a.vm_pace(pace)
            a.vmem(f"buffer_load_dwordx4 {voff}, s[{sr}:{sr+3}], {soff} offen {pol} lds", tag)
            if i < 7: a(f"s_add_u32 {soff}, {soff}, {stride}")
            if fill and i in fill: fill[i]()
    def poll(loads, regs, vt="v3", cnt="s31"):
        L = a.label("poll"); D = a.label("polld")
        a(f"s_mov_b32 {cnt}, 0\n{L}:")
        for l in loads: a(l)
        a("s_waitcnt vmcnt(0)")
        check(regs, vt)
        a(f"""s_cbranch_vccz {D}
        s_add_u32 {cnt}, {cnt}, 1
        s_cmp_lt_u32 {cnt}, {SPIN_MAX}
        s_cbranch_scc1 {L}
        {D}:""")
        a.vm_reset()
    def check(regs, vt):
        r = list(regs)
        if len(r) == 1: a(f"v_cmp_eq_u32 vcc, -1, v{r[0]}"); return
        if len(r) == 2: a(f"v_max_u32 {vt}, v{r[0]}, v{r[1]}"); r = []
        else: a(f"v_max3_u32 {vt}, v{r[0]}, v{r[1]}, v{r[2]}"); r = r[3:]
        while r:
            if len(r) >= 2: a(f"v_max3_u32 {vt}, {vt}, v{r[0]}, v{r[1]}"); r = r[2:]
            else: a(f"v_max_u32 {vt}, {vt}, v{r[0]}"); r = []
        a(f"v_cmp_eq_u32 vcc, -1, {vt}")
    def cnt_poll(off, targets):
        L = a.label("cp"); D = a.label("cpd"); n = len(targets)
        a(f"s_mov_b32 s31, 0\n{L}:")
        if n == 1: a(f"global_load_dword v4, {off}, s[60:61] sc1")
        else: a(f"global_load_dwordx2 v[4:5], {off}, s[60:61] sc1")
        a("s_waitcnt vmcnt(0)")
        a(f"v_cmp_gt_u32 vcc, {targets[0]}, v4")
        if n == 2: a(f"v_cmp_gt_u32 s[32:33], {targets[1]}, v5\ns_or_b64 vcc, vcc, s[32:33]")
        a(f"""s_cbranch_vccz {D}
        s_add_u32 s31, s31, 1
        s_cmp_lt_u32 s31, {SPIN_MAX}
        s_cbranch_scc1 {L}
        {D}:""")
        a.vm_reset()
    def row_reduce(op, v, steps=(1, 2, 4, 8)):
        for n in steps: a(f"{op}_dpp {v}, {v}, {v} row_ror:{n} row_mask:0xf bank_mask:0xf")
    def xrow_reduce(op, v, t):
        a(f"v_mov_b32 {t}, {v}\nv_permlane16_swap_b32 {t}, {v}\n{op} {v}, {v}, {t}\nv_mov_b32 {t}, {v}\nv_permlane32_swap_b32 {t}, {v}\n{op} {v}, {v}, {t}")
    def guard(text):
        if not dry: a(text); return
        L = a.label("g"); a(f"s_cbranch_execz {L}"); a(text); a(f"{L}:")
    def setexec(val):
        lo, hi = val & 0xffffffff, val >> 32
        return f"s_mov_b32 exec_lo, {lo:#x}\ns_mov_b32 exec_hi, {hi:#x}"
    def finish(): a("s_branch L_finish" if diag else "s_endpgm")

    a(f"""
    s_cmp_ge_u32 s2, 256
    s_cbranch_scc1 L_end
    s_load_dwordx16 s[36:51], s[0:1], 0
    s_load_dwordx8 s[52:59], s[0:1], 64
    s_load_dwordx4 s[60:63], s[0:1], 96
    """)
    if diag:
        for i in range(1, 8): a(f"s_mov_b32 s{80+2*i}, 0")
    stamp(0)
    a(f"""
    v_lshrrev_b32 v1, 6, v0
    v_and_b32 v0, 63, v0
    v_mov_b32 v2, 0
    v_readfirstlane_b32 s3, v1
    s_and_b32 s4, s2, 7
    s_bfe_u32 s5, s2, 0x30003
    s_lshr_b32 s6, s2, 6
    s_mov_b32 s28, 0
    s_mov_b32 s29, 0
    s_lshl_b32 s7, s4, 2
    s_add_u32 s7, s7, s6
    s_sub_u32 s7, s7, 4
    s_cmp_ge_u32 s4, 2
    s_cbranch_scc1 L_typed
    s_lshl_b32 s7, s4, 1
    s_add_u32 s7, s7, s6
    s_cmp_eq_u32 s6, 1
    s_cbranch_scc1 L_typed
    s_cmp_eq_u32 s6, 0
    s_cbranch_scc0 L_typeP
    s_mov_b32 s28, 1
    s_lshl_b32 s29, s5, 1
    s_add_u32 s29, s29, s4
    s_branch L_typed
    L_typeP:
    s_mov_b32 s28, 2
    s_sub_u32 s29, s7, 2
    s_lshl_b32 s29, s29, 3
    s_add_u32 s29, s29, s5
    L_typed:
    s_mov_b32 {SELLO}, 0x05040100
    s_mov_b32 {SELHI}, 0x07060302
    s_mov_b32 {HIM}, 0xffff0000
    s_mov_b32 {CEXP}, {f32(math.log2(math.e)/16)}
    s_cmp_lt_u32 s3, 8
    s_cbranch_scc1 L_stream
    s_cmp_eq_u32 s3, 15
    s_cbranch_scc1 L_comm
    """)
    WS = "s[24:27]"
    def ws_srd(): srd(24, 62, hex(0x300000 if diag else 0x200000))

    a("s_sub_u32 s3, s3, 8\ns_barrier\ns_waitcnt lgkmcnt(0)")
    ws_srd()
    a(f"""
    v_lshrrev_b32 v3, 4, v0
    v_lshlrev_b32 v3, 1, v3
    v_and_b32 v4, 1, v0
    v_add_u32 v3, v3, v4
    v_lshlrev_b32 v6, 4, v3
    s_lshl_b32 s30, s3, 7
    v_add_u32 v6, s30, v6
    v_bfe_u32 v7, v0, 1, 3
    v_lshlrev_b32 v31, 4, v0
    s_cmp_eq_u32 s28, 0
    s_cbranch_scc1 L_svc_w
    """)
    srd(68, 56, 448*5376); srd(76, 54, 7168)
    a("s_cmp_eq_u32 s28, 2\ns_cbranch_scc1 L_svc_P")

    def gemv8_finish(Wb, red, cnt):
        for j in range(8): a(f"v_mfma_f32_16x16x32_bf16 {vr(Wb+4*j)}, v[12:15], {vr(Wb+4*j)}, 0")
        for j in range(8):
            D = Wb + 4*j
            a(f"v_add_f32_dpp v{16+j}, v{D+1}, v{D} row_ror:8 row_mask:0xf bank_mask:0x3")
            a(f"v_add_f32_dpp v{16+j}, v{D+2}, v{D+3} row_ror:8 row_mask:0xf bank_mask:0xc")
        a(f"""s_lshl_b32 s30, s3, 11
        v_add_u32 v3, s30, v31
        ds_write_b128 v3, v[16:19] offset:{red}
        ds_write_b128 v3, v[20:23] offset:{red+1024}
        s_waitcnt lgkmcnt(0)""")
        lds_inc(cnt)
    def reduce_publish(red, cnt, rowstride, soff_code):
        lds_spin(cnt, 7); lds_spin(FC, 1)
        for rnd, ws_ in enumerate([range(0, 4), range(4, 7)]):
            for k, w in enumerate(ws_):
                a(f"ds_read_b128 {vr(W2+8*k)}, v31 offset:{red+w*2048}\nds_read_b128 {vr(W2+8*k+4)}, v31 offset:{red+w*2048+1024}")
            a("s_waitcnt lgkmcnt(0)")
            for k, w in enumerate(ws_):
                for j in range(8):
                    if w == 0: a(f"v_mov_b32 v{16+j}, v{W2+j}")
                    else: a(f"v_add_f32 v{16+j}, v{16+j}, v{W2+8*k+j}")
        for d in range(4): a(f"v_cvt_pk_bf16_f32 v{24+d}, v{16+2*d}, v{17+2*d}\nv_min_u32 v{24+d}, -2, v{24+d}")
        a(f"v_lshrrev_b32 v3, 3, v0\nv_mul_u32_u24 v3, {rowstride}, v3\nv_and_b32 v4, 7, v0\nv_lshl_add_u32 v3, v4, 4, v3")
        a(soff_code)
        a.vmem(f"buffer_store_dwordx4 v[24:27], v3, {WS}, s33 offen sc1")
    def mod_issue(blk_code):
        block_voff("v1", 5376)
        a(f"s_mul_i32 s34, s3, {64*5376}")
        a(blk_code)
        a("s_lshl_b32 s30, s35, 7\ns_add_u32 s34, s34, s30")
        a("v_mul_u32_u24 v3, 896, v7\nv_add_u32 v3, v3, v6")
        a.vmem("buffer_load_dwordx4 v[8:11], v3, s[76:79], 0 offen", "c")
        load_block(W2, "v1", 68, "s34", 5376, tag="wm")
    def mod_compute(red, cnt):
        a.vm_wait("c")
        for d in range(4): unpack2(f"v{16+2*d}", f"v{17+2*d}", f"v{8+d}")
        for i in range(8): a(f"v_mul_f32 v{24+i if i < 4 else 4+i}, {f32(-math.log2(math.e))}, v{16+i}")
        T = lambda i: 24+i if i < 4 else 4+i
        for i in range(8): a(f"v_exp_f32 v{T(i)}, v{T(i)}")
        for i in range(8): a(f"v_add_f32 v{T(i)}, 1.0, v{T(i)}")
        for i in range(8): a(f"v_rcp_f32 v{T(i)}, v{T(i)}")
        for i in range(8): a(f"v_mul_f32 v{16+i}, v{16+i}, v{T(i)}")
        for d in range(4): a(f"v_cvt_pk_bf16_f32 v{12+d}, v{16+2*d}, v{17+2*d}")
        a.vm_wait("wm")
        transpose_inplace(W2)
        gemv8_finish(W2, red, cnt)
        L = a.label("nored")
        a(f"s_cmp_lg_u32 s3, 0\ns_cbranch_scc1 {L}")
        reduce_publish(red, cnt, 5376, f"s_lshl_b32 s33, s35, 7\ns_add_u32 s33, s33, {MOD_OFF}")
        a(f"{L}:")

    a.vm_reset()
    mod_issue("s_mov_b32 s35, s29")
    lds_inc(CRIT)
    mod_compute(RED, RC0)
    stamp(1)
    a("s_branch L_svc_w")

    a("L_svc_P:")
    a.vm_reset()
    srd(72, 42, 448*8192); srd(96, 36, 7168)
    a("v_mul_u32_u24 v3, 896, v7\nv_add_u32 v3, v3, v6")
    a.vmem("buffer_load_dwordx4 v[8:11], v3, s[96:99], 0 offen", "x")
    block_voff("v1", 8192)
    a(f"s_mul_i32 s34, s3, {64*8192}\ns_lshl_b32 s30, s29, 8\ns_add_u32 s34, s34, s30\ns_add_u32 s35, s34, 128")
    load_block(W0, "v1", 72, "s34", 8192, tag="q0")
    load_block(W1, "v1", 72, "s35", 8192, tag="q1")
    lds_inc(CRIT)
    a.vm_wait("x")
    for d in range(4): unpack2(f"v{16+2*d}", f"v{17+2*d}", f"v{8+d}")
    a("v_add_f32 v24, v16, v17")
    for i in range(2, 8): a(f"v_add_f32 v24, v24, v{16+i}")
    a("v_add_f32_dpp v24, v24, v24 quad_perm:[1,0,3,2] row_mask:0xf bank_mask:0xf")
    xrow_reduce("v_add_f32", "v24", "v3")
    a(f"v_mul_f32 v24, {f32(1/64)}, v24\nv_mov_b32 v25, 0")
    for i in range(8): a(f"v_sub_f32 v3, v{16+i}, v24\nv_fmac_f32 v25, v3, v3")
    a("v_add_f32_dpp v25, v25, v25 quad_perm:[1,0,3,2] row_mask:0xf bank_mask:0xf")
    xrow_reduce("v_add_f32", "v25", "v3")
    a(f"""s_lshl_b32 s30, s3, 3
    v_lshlrev_b32 v26, 6, v7
    v_add_u32 v3, s30, v26
    ds_write_b64 v3, v[24:25] offset:{XST}
    s_waitcnt lgkmcnt(0)""")
    lds_inc(XC); lds_spin(XC, 7)
    for k in range(4): a(f"ds_read_b128 {vr(W2+4*k)}, v26 offset:{XST+16*k}")
    a(f"s_waitcnt lgkmcnt(0)\nv_add_f32 v24, v{W2}, v{W2+2}")
    for w in range(2, 7): a(f"v_add_f32 v24, v24, v{W2+2*w}")
    a(f"v_mul_f32 v24, {f32(1/7)}, v24\nv_mov_b32 v25, 0\nv_mov_b32 v27, 0")
    for w in range(7): a(f"v_sub_f32 v3, v{W2+2*w}, v24\nv_fmac_f32 v25, v3, v3\nv_add_f32 v27, v27, v{W2+2*w+1}")
    a(f"v_fmac_f32 v27, {f32(64.0)}, v25\nv_mul_f32 v25, {f32(1/448)}, v27")
    round2("v24", "v25", "v3")
    a(f"v_add_f32 v25, {f32(1e-5)}, v25"); round1("v25")
    a("v_sqrt_f32 v25, v25"); round1("v25")
    a("v_rcp_f32 v25, v25")
    for i in range(8): a(f"v_sub_f32 v{16+i}, v{16+i}, v24")
    for d in range(4): round2(f"v{16+2*d}", f"v{17+2*d}", "v3")
    for i in range(8): a(f"v_mul_f32 v{16+i}, v{16+i}, v25")
    for d in range(4): round2(f"v{16+2*d}", f"v{17+2*d}", "v3")
    a.vm_wait("q0"); transpose_inplace(W0)
    a.vm_wait("q1"); transpose_inplace(W1)
    lds_spin(F0, 1)
    a(f"v_mul_u32_u24 v30, 5376, v7\nv_add_u32 v30, v30, v6")
    poll([f"buffer_load_dwordx4 v[8:11], v30, {WS}, 0 offen offset:{MOD_OFF} sc1",
          f"buffer_load_dwordx4 v[24:27], v30, {WS}, 0 offen offset:{MOD_OFF+896} sc1"], list(range(8, 12)) + list(range(24, 28)))
    stamp(1)
    for d in range(4):
        unpack2("v28", "v29", f"v{24+d}")
        a("v_add_f32 v28, 1.0, v28\nv_add_f32 v29, 1.0, v29"); round2("v28", "v29", "v3")
        a(f"v_mul_f32 v{16+2*d}, v{16+2*d}, v28\nv_mul_f32 v{17+2*d}, v{17+2*d}, v29"); round2(f"v{16+2*d}", f"v{17+2*d}", "v3")
        unpack2("v28", "v29", f"v{8+d}")
        a(f"v_add_f32 v{16+2*d}, v{16+2*d}, v28\nv_add_f32 v{17+2*d}, v{17+2*d}, v29\nv_cvt_pk_bf16_f32 v{12+d}, v{16+2*d}, v{17+2*d}")
    gemv8_finish(W0, GU, RC1)
    gemv8_finish(W1, GU + 14336, RC2)
    a("s_cmp_lg_u32 s3, 0\ns_cbranch_scc1 L_pq1")
    reduce_publish(GU, RC1, 8192, f"s_lshl_b32 s33, s29, 8\ns_add_u32 s33, s33, {Q_OFF}")
    a("L_pq1:\ns_cmp_lg_u32 s3, 1\ns_cbranch_scc1 L_pq2")
    reduce_publish(GU + 14336, RC2, 8192, f"s_lshl_b32 s33, s29, 8\ns_add_u32 s33, s33, {Q_OFF+128}")
    a("L_pq2:")
    stamp(2)
    a("s_cmp_ge_u32 s29, 26\ns_cbranch_scc1 L_svc_w\ns_waitcnt vmcnt(0)")
    a.vm_reset()
    mod_issue("s_add_u32 s35, s29, 16")
    mod_compute(RED, RC0)

    a("L_svc_w:\ns_waitcnt vmcnt(0)")
    a.vm_reset()
    srd(8, 44, 4096*896); srd(12, 52, 1792*896); srd(16, 48, 448*3584); srd(20, 50, 448*3584)
    block_voff("v1", 896); block_voff("v8", 3584)
    a(f"""s_lshl_b32 s30, s4, 9
    s_lshl_b32 s31, s6, 6
    s_add_u32 s30, s30, s31
    s_mul_i32 s34, s30, 896
    s_lshl_b32 s31, s3, 7
    s_add_u32 s34, s34, s31
    s_add_u32 s35, s34, {256*896}
    s_cmp_eq_u32 s28, 2
    s_cbranch_scc1 L_svc_wo
    s_mul_i32 s100, s3, {64*3584}
    s_lshl_b32 s30, s7, 7
    s_add_u32 s100, s100, s30
    s_mov_b32 s101, s100
    s_lshl_b32 s33, s3, 13
    s_add_u32 s33, s33, {GU}""")
    dma_block("s33", "v8", 16, "s100", 3584, pace=dw)
    a(f"s_add_u32 s33, s33, {7*8192}")
    dma_block("s33", "v8", 20, "s101", 3584, pace=dw)
    a(f"s_mul_i32 s100, s7, {64*896}\ns_add_u32 s100, s100, s31")
    load_block(W2, "v1", 12, "s100", 896, pace=dw, tag="wd")
    a("L_svc_wo:")
    load_block(W0, "v1", 8, "s34", 896, pace=dw, tag="wo0", fill={dw: lambda: (a.vm_wait("wd"), transpose_inplace(W2))})
    load_block(W1, "v1", 8, "s35", 896, pace=dw, tag="wo1", fill={dw: lambda: (a.vm_wait("wo0"), transpose_inplace(W0))})
    a.vm_wait("wo1"); transpose_inplace(W1)
    a(f"""v_lshrrev_b32 v3, 4, v0
    v_and_b32 v4, 1, v0
    v_lshl_add_u32 v4, v3, 1, v4
    v_lshlrev_b32 v9, 5, v4
    v_and_b32 v5, 7, v0
    v_lshlrev_b32 v5, 5, v5
    v_lshl_add_u32 v10, v3, 4, v5
    v_lshrrev_b32 v11, 5, v0
    v_lshl_add_u32 v11, v11, 4, v5
    s_lshl_b32 s30, s5, 5
    s_lshl_b32 s31, s4, 2
    s_add_u32 s31, s31, s6
    s_add_u32 s31, s31, s30
    s_mul_i32 s34, s31, 1792
    s_lshl_b32 s33, s3, 8
    s_add_u32 s34, s34, s33
    s_add_u32 s34, s34, {PA_OFF}
    s_mul_i32 s35, s30, 1792
    s_add_u32 s35, s35, s33
    s_add_u32 s35, s35, {PA_OFF}
    s_mul_i32 s100, s5, 28
    s_add_u32 s100, s100, s7
    s_mul_i32 s100, s100, 1792
    s_add_u32 s100, s100, s33
    s_add_u32 s100, s100, {PD_OFF}
    v_mul_u32_u24 v1, 1792, v3
    v_and_b32 v4, 15, v0
    v_lshl_add_u32 v1, v4, 4, v1
    v_lshl_add_u32 v8, v4, 2, v3
    s_lshl_b32 s30, s3, 6
    v_add_u32 v8, s30, v8""")
    for r in range(1, 8): a(f"s_add_u32 s{68+r}, s35, {r*4*1792}")
    a("s_mov_b32 s68, s35")
    stamp(3)
    a("L_svc_tail:")
    guard("s_barrier")
    a(f"""ds_read_b128 v[12:15], v9 offset:{OACC}
    ds_read_b128 v[16:19], v9 offset:{OACC+16}
    ds_read_b128 v[20:23], v9 offset:{OACC+256}
    ds_read_b128 v[24:27], v9 offset:{OACC+272}
    s_waitcnt lgkmcnt(2)""")
    for d in range(4): a(f"v_cvt_pk_bf16_f32 v{12+d}, v{12+2*d}, v{13+2*d}")
    a("s_waitcnt lgkmcnt(0)")
    for d in range(4): a(f"v_cvt_pk_bf16_f32 v{16+d}, v{20+2*d}, v{21+2*d}")
    for j in range(8): a(f"v_mfma_f32_16x16x32_bf16 {vr(W0+4*j)}, v[12:15], {vr(W0+4*j)}, 0")
    for j in range(8): a(f"v_mfma_f32_16x16x32_bf16 {vr(W0+4*j)}, v[16:19], {vr(W1+4*j)}, {vr(W0+4*j)}")
    for j in range(8): a(f"v_add_f32_dpp v{20+(j&3)}, v{W0+4*j+1}, v{W0+4*j} row_ror:8 row_mask:{1<<(j>>2):#x} bank_mask:0x3")
    guard(setexec(0x00FF00FF) + f"\nbuffer_store_dwordx4 v[20:23], v10, {WS}, s34 offen sc1\ns_mov_b64 exec, -1")
    stamp(4)
    Lp = a.label("notP")
    if dry: a(f"s_cbranch_execz {Lp}")
    a(f"s_cmp_lg_u32 s28, 2\ns_cbranch_scc1 {Lp}"); finish(); a(f"{Lp}:")
    gl = "\n".join(f"buffer_load_dwordx4 {vr(W0+4*r)}, v1, {WS}, s{68+r} offen sc1" for r in range(8))
    guard(gl)
    a(f"s_lshl_b32 s33, s3, 13\ns_add_u32 s33, s33, {GU}\ns_mov_b32 s32, {GUACC}")
    def g_prep():
        a("v_lshlrev_b32 v3, 4, v0\nv_add_u32 v3, s33, v3")
        for i in range(8): a(f"ds_read_b128 {vr(W1+4*i)}, v3 offset:{i*1024}")
        a(f"""v_lshrrev_b32 v3, 4, v0
        v_and_b32 v4, 1, v0
        v_lshl_add_u32 v3, v3, 1, v4
        v_bfe_u32 v4, v0, 1, 2
        v_lshlrev_b32 v4, 1, v4
        v_lshl_add_u32 v12, v3, 3, v4
        s_lshl_b32 s30, s3, 6
        v_add_u32 v13, s30, v12
        v_lshlrev_b32 v3, 1, v13
        ds_read_b32 v14, v3 offset:{MODL+896}
        ds_read_b32 v16, v3 offset:{MODL+1792}
        v_lshlrev_b32 v13, 2, v13
        v_lshlrev_b32 v12, 2, v12
        v_and_b32 v3, 7, v0
        v_cmp_gt_u32 vcc, 7, v3
        v_cndmask_b32 v18, 0, v3, vcc
        v_mov_b32 v4, {f32(1/7)}
        v_cndmask_b32 v20, 0, v4, vcc
        v_mov_b32 v4, {f32(1/448)}
        v_cndmask_b32 v21, 0, v4, vcc
        v_lshlrev_b32 v19, 8, v18
        v_lshlrev_b32 v18, 3, v18
        v_lshlrev_b32 v3, 5, v3
        v_lshrrev_b32 v4, 5, v0
        v_lshl_add_u32 v3, v4, 4, v3
        v_bfe_u32 v4, v0, 3, 1
        v_lshl_add_u32 v3, v4, 2, v3
        v_add_u32 v22, s32, v3
        s_waitcnt lgkmcnt(0)""")
        unpack2("v14", "v15", "v14"); unpack2("v16", "v17", "v16")
        a("v_add_f32 v16, 1.0, v16\nv_add_f32 v17, 1.0, v17"); round2("v16", "v17", "v3")
        transpose_inplace(W1)
    g_prep()
    a(f"""v_lshlrev_b32 v3, 1, v8
    ds_read_u16 v23, v3 offset:{MODL}
    ds_read_u16 v24, v3 offset:{XL}
    v_lshlrev_b32 v25, 2, v8
    v_lshrrev_b32 v26, 5, v0
    v_lshlrev_b32 v26, 2, v26
    s_lshl_b32 s30, s3, 3
    v_add_u32 v26, s30, v26
    s_waitcnt lgkmcnt(0)
    v_lshlrev_b32 v23, 16, v23
    v_lshlrev_b32 v24, 16, v24
    s_mov_b32 s31, 0""")
    L = a.label("pa"); D = a.label("pad")
    a(f"{L}:\ns_waitcnt vmcnt(0)")
    check(range(W0, W0+32), "v3")
    a(f"s_cbranch_vccz {D}\ns_add_u32 s31, s31, 1\ns_cmp_ge_u32 s31, {SPIN_MAX}\ns_cbranch_scc1 {D}")
    a(gl); a(f"s_branch {L}\n{D}:")
    stamp(5)
    for st in (16, 8, 4):
        for k in range(0, st, 2): a(f"v_pk_add_f32 v[{W0+k}:{W0+k+1}], v[{W0+k}:{W0+k+1}], v[{W0+st+k}:{W0+st+k+1}]")
    a(f"""v_permlane32_swap_b32 v{W0}, v{W0+2}
    v_permlane32_swap_b32 v{W0+1}, v{W0+3}
    v_add_f32 v{W0}, v{W0}, v{W0+2}
    v_add_f32 v{W0+1}, v{W0+1}, v{W0+3}
    v_permlane16_swap_b32 v{W0}, v{W0+1}
    v_add_f32 v27, v{W0}, v{W0+1}""")
    round1("v27"); a("v_mul_f32 v27, v27, v23"); round1("v27"); a("v_add_f32 v27, v27, v24"); round1("v27")
    a(f"""ds_write_b32 v25, v27 offset:{X1L}
    v_readfirstlane_b32 s30, v27
    v_subrev_f32 v28, s30, v27
    v_mul_f32 v29, v28, v28
    v_permlane32_swap_b32 v28, v29
    v_add_f32 v28, v28, v29""")
    row_reduce("v_add_f32", "v28")
    a("v_mov_b32 v29, v28\nv_permlane16_swap_b32 v28, v29\nv_add_f32 v28, v28, v29")
    a(f"ds_write_b32 v26, v28 offset:{STL}\ns_waitcnt lgkmcnt(0)")
    a("L_gstage:")
    guard("s_barrier")
    a(f"""ds_read_b64 v[24:25], v18 offset:{STL}
    ds_read_b32 v26, v19 offset:{X1L}
    ds_read_b64 v[28:29], v13 offset:{X1L}
    s_waitcnt lgkmcnt(1)
    v_mul_f32 v3, {f32(1/64)}, v24
    v_add_f32 v26, v26, v3
    v_fma_f32 v25, -v3, v24, v25
    v_mul_f32 v27, v26, v20""")
    row_reduce("v_add_f32", "v27", (1, 2, 4))
    a(f"v_sub_f32 v26, v26, v27\nv_mul_f32 v26, v26, v26\nv_fmac_f32 v25, {f32(64.0)}, v26\nv_mul_f32 v25, v25, v21")
    row_reduce("v_add_f32", "v25", (1, 2, 4))
    round2("v27", "v25", "v3")
    a(f"v_add_f32 v25, {f32(1e-5)}, v25\ns_waitcnt lgkmcnt(0)\nv_sub_f32 v28, v28, v27\nv_cvt_pk_bf16_f32 v25, v25, v25\nv_sub_f32 v29, v29, v27\nv_lshlrev_b32 v25, 16, v25")
    a("v_sqrt_f32 v25, v25"); round2("v28", "v29", "v3"); round1("v25")
    a("v_rcp_f32 v25, v25\nv_mul_f32 v28, v28, v25\nv_mul_f32 v29, v29, v25"); round2("v28", "v29", "v3")
    a("v_mul_f32 v28, v28, v16\nv_mul_f32 v29, v29, v17"); round2("v28", "v29", "v3")
    a("v_add_f32 v28, v28, v14\nv_add_f32 v29, v29, v15\nv_cvt_pk_bf16_f32 v24, v28, v29")
    for d in range(1, 4): a(f"v_mov_b32_dpp v{24+d}, v24 row_ror:{16-2*d} row_mask:0xf bank_mask:0xf")
    for j in range(8): a(f"v_mfma_f32_16x16x32_bf16 {vr(W1+4*j)}, v[24:27], {vr(W1+4*j)}, 0")
    for j in range(8):
        Dj = W1 + 4*j; up = j & 1
        a(f"v_add_f32_dpp v{28+((j>>1)&1)}, v{Dj+1-up}, v{Dj+up} row_ror:8 row_mask:{1<<(2*(j>>2)):#x} bank_mask:{0xc if up else 0x3:#x}")
    guard(setexec(0x0000FFFF0000FFFF) + "\nds_add_f32 v22, v28\nds_add_f32 v22, v29 offset:8\ns_mov_b64 exec, -1\ns_waitcnt lgkmcnt(0)\ns_barrier")
    Lq = a.label("isgate")
    if dry: a(f"s_cbranch_execz {Lq}")
    a(f"s_cmp_eq_u32 s32, {GUACC}\ns_cbranch_scc1 {Lq}"); finish(); a(f"{Lq}:")
    a(f"ds_read_b64 v[24:25], v12 offset:{GUACC}\nds_read_b64 v[28:29], v12 offset:{GUACC+256}\ns_waitcnt lgkmcnt(1)")
    round2("v24", "v25", "v3")
    a(f"v_mul_f32 v24, {f32(-math.log2(math.e))}, v24\nv_mul_f32 v25, {f32(-math.log2(math.e))}, v25\nv_exp_f32 v24, v24\nv_exp_f32 v25, v25\ns_waitcnt lgkmcnt(0)")
    a("v_cvt_pk_bf16_f32 v3, v28, v29\nv_add_f32 v24, 1.0, v24\nv_add_f32 v25, 1.0, v25\nv_rcp_f32 v24, v24\nv_rcp_f32 v25, v25")
    unpack2("v28", "v29", "v3"); round2("v24", "v25", "v3")
    a("v_mul_f32 v24, v24, v28\nv_mul_f32 v25, v25, v29\nv_cvt_pk_bf16_f32 v24, v24, v25")
    for d in range(1, 4): a(f"v_mov_b32_dpp v{24+d}, v24 row_ror:{16-2*d} row_mask:0xf bank_mask:0xf")
    for j in range(8): a(f"v_mfma_f32_16x16x32_bf16 {vr(W2+4*j)}, v[24:27], {vr(W2+4*j)}, 0")
    for j in range(8): a(f"v_add_f32_dpp v{28+(j&3)}, v{W2+4*j+1}, v{W2+4*j} row_ror:8 row_mask:{1<<(2*(j>>2)):#x} bank_mask:0x3")
    guard(setexec(0x000000FF000000FF) + f"\nbuffer_store_dwordx4 v[28:31], v11, {WS}, s100 offen sc1\ns_mov_b64 exec, -1")
    stamp(6)
    if dry: a("s_cbranch_execz L_dry2")
    finish()

    a("L_stream:")
    a(f"""s_lshl_b32 s30, s5, 3
    s_add_u32 s30, s30, s4
    s_lshl_b32 s31, s30, 22
    s_add_u32 s31, s31, 0x300000
    v_and_b32 v3, 7, v0
    v_lshlrev_b32 v1, 9, v3
    v_bfe_u32 v4, v0, 3, 1
    v_lshl_add_u32 v1, v4, 4, v1
    v_lshrrev_b32 v4, 4, v0
    v_lshl_add_u32 v1, v4, 5, v1
    v_lshrrev_b32 v4, 3, v0
    v_lshlrev_b32 v4, 12, v4
    v_lshl_add_u32 v14, v3, 4, v4
    s_lshl_b32 s32, s6, 15
    s_lshl_b32 s33, s3, 12
    s_add_u32 s34, s32, s33
    s_lshl_b32 s32, s6, 7
    s_lshl_b32 s33, s3, 15
    s_add_u32 s35, s32, s33
    s_barrier
    s_waitcnt lgkmcnt(0)
    s_add_u32 s8, s38, s31
    s_addc_u32 s9, s39, 0
    s_mov_b32 s10, 0x100000
    s_mov_b32 s11, 0x20000
    s_add_u32 s12, s40, s31
    s_addc_u32 s13, s41, 0
    s_mov_b32 s14, 0x100000
    s_mov_b32 s15, 0x20000""")
    ws_srd()
    a("s_cmp_eq_u32 s28, 0\ns_cbranch_scc1 L_st_go")
    lds_spin(CRIT, 7)
    a("L_st_go:")
    a.vm_reset()
    kslot = lambda t: 32 + 16*(t % 6)
    nk = [0]
    def kload(t, j):
        if nk[0] >= dk: a.vm_pace(dk)
        nk[0] += 1
        a.vmem(f"buffer_load_dwordx4 {vr(kslot(t)+4*j)}, v1, s[8:11], s34 offen offset:{j*128} {pol}", f"k{t}")
        if j == 3: a(f"s_add_u32 s34, s34, {4*32768}")
    def kmm(t):
        a.vm_wait(f"k{t}")
        D = 4 + 4*(t & 1)
        for j in range(4): a(f"v_mfma_f32_16x16x32_bf16 {vr(D)}, {vr(16+4*j)}, {vr(kslot(t)+4*j)}, {vr(D) if j else 0}")
    def kfin(t):
        D = 4 + 4*(t & 1); up = t & 1
        for h in range(2):
            a(f"v_add_f32_dpp v{12+h}, v{D+h+(0 if up else 2)}, v{D+h+(2 if up else 0)} row_ror:8 row_mask:{1<<(t>>1):#x} bank_mask:{0xc if up else 0x3:#x}")
    for t in range(6):
        for j in range(4): kload(t, j)
    stamp(1)
    lds_spin(FQ, 1)
    stamp(2)
    a(f"""v_and_b32 v3, 1, v0
    v_lshlrev_b32 v3, 9, v3
    v_bfe_u32 v4, v0, 1, 1
    v_lshl_add_u32 v3, v4, 4, v3
    v_lshrrev_b32 v4, 4, v0
    v_lshl_add_u32 v3, v4, 5, v3""")
    for j in range(4): a(f"ds_read_b128 {vr(16+4*j)}, v3 offset:{QL+j*128}")
    a("s_waitcnt lgkmcnt(0)")
    kmm(0); kload(6, 0); kmm(1); kfin(0); kload(6, 1); kfin(1); kmm(2); kload(6, 2); kfin(2); kmm(3); kload(6, 3); kfin(3)
    kload(7, 0); kmm(4); kload(7, 1); kfin(4); kmm(5); kload(7, 2); kfin(5); kload(7, 3)
    vreg = lambda r: 64 if r % 2 == 0 else 32
    def vphase(d):
        vm0 = list(a.vm)
        def vload(r, i):
            a.vm_pace(d)
            a.vmem(f"buffer_load_dwordx4 {vr(vreg(r)+4*i)}, v14, s[12:15], s35 offen offset:{i*512} {pol}", f"v{r}_{i}")
            if i == 7: a(f"s_add_u32 s35, s35, {8*32768}")
        def publish():
            a(f"""v_cvt_pk_bf16_f32 v96, v12, v13
            s_lshl_b32 s30, s5, 3
            s_add_u32 s30, s30, s4
            s_lshl_b32 s31, s6, 3
            s_add_u32 s31, s31, s3
            v_min_u32 v96, -2, v96
            s_lshl_b32 s32, s30, 13
            s_lshl_b32 s33, s31, 8
            s_add_u32 s32, s32, s33
            s_add_u32 s32, s32, {SC_OFF}
            v_lshlrev_b32 v3, 2, v0""")
            a.vmem(f"buffer_store_dword v96, v3, {WS}, s32 offen sc1")
            unpack2("v12", "v13", "v96")
            a("v_mov_b32 v100, v12\nv_mov_b32 v102, v13")
            for n in (1, 2, 4, 8):
                for v in ("v100", "v102"): a(f"v_max_f32_dpp {v}, {v}, {v} row_ror:{n} row_mask:0xf bank_mask:0xf")
            xrow_reduce("v_max_f32", "v100", "v3"); xrow_reduce("v_max_f32", "v102", "v97")
            a(f"""v_sub_f32 v101, v12, v100
            v_sub_f32 v103, v13, v102
            v_mul_f32 v101, {CEXP}, v101
            v_mul_f32 v103, {CEXP}, v103
            v_exp_f32 v101, v101
            v_exp_f32 v103, v103""")
            for n in (1, 2, 4, 8):
                for v in ("v101", "v103"): a(f"v_add_f32_dpp {v}, {v}, {v} row_ror:{n} row_mask:0xf bank_mask:0xf")
            xrow_reduce("v_add_f32", "v101", "v3"); xrow_reduce("v_add_f32", "v103", "v97")
            a(f"s_lshl_b32 s32, s30, 9\ns_lshl_b32 s33, s31, 4\ns_add_u32 s32, s32, s33\ns_add_u32 s32, s32, {ST_OFF}\ns_mov_b64 exec, 1")
            a.vmem(f"buffer_store_dwordx4 v[100:103], v2, {WS}, s32 offen sc1")
            a("s_mov_b64 exec, -1")
            lds_inc(KDONE)
            stamp(3)
            for k in range(16, 32): a(f"v_mov_b32 v{k}, 0")
        def softmax():
            lds_spin(FP, 1)
            stamp(4)
            a(f"""v_lshrrev_b32 v3, 4, v0
            v_bfe_u32 v4, v0, 1, 1
            v_lshl_add_u32 v3, v3, 1, v4
            v_lshlrev_b32 v3, 8, v3
            v_bfe_u32 v4, v0, 2, 2
            v_lshl_add_u32 v3, v4, 6, v3
            s_and_b32 s30, s3, 3
            s_lshl_b32 s30, s30, 11
            s_lshr_b32 s31, s3, 2
            s_lshl_b32 s31, s31, 5
            s_add_u32 s30, s30, s31
            v_add_u32 v3, s30, v3
            ds_read_b128 v[108:111], v3 offset:{SCL}
            ds_read_b128 v[112:115], v3 offset:{SCL+16}
            v_and_b32 v4, 1, v0
            v_lshlrev_b32 v5, 3, v4
            ds_read_b64 v[116:117], v5 offset:{MS}
            v_mul_u32_u24 v4, 0x0202, v4
            v_lshlrev_b32 v4, 16, v4
            v_add_u32 v4, 0x05040c0c, v4
            s_waitcnt lgkmcnt(0)""")
            for i in range(8): a(f"v_perm_b32 v{108+i}, v{108+i}, v{108+i}, v4")
            for i in range(8): a(f"v_fma_f32 v{108+i}, v{108+i}, {CEXP}, -v116")
            for i in range(8): a(f"v_exp_f32 v{108+i}, v{108+i}")
            for i in range(8): a(f"v_mul_f32 v{108+i}, v{108+i}, v117")
            for k in range(4): a(f"v_cvt_pk_bf16_f32 v{96+k}, v{108+2*k}, v{109+2*k}")
        def amake(r):
            for jj in range(4):
                n = (4*(jj - r)) % 16
                for k in range(4):
                    a(f"v_mov_b32_dpp v{16+4*jj+k}, v{96+k} " + (f"row_ror:{n}" if n else "quad_perm:[0,1,2,3]") + f" row_mask:0xf bank_mask:{1<<jj:#x}")
        def pv(r, js):
            R = vreg(r)
            for j in js:
                T = 108 + 4*(j & 3)
                for i2 in range(4): a(f"v_perm_b32 v{T+i2}, v{R+8*i2+4+(j>>1)}, v{R+8*i2+(j>>1)}, {SELHI if j & 1 else SELLO}")
                D = 100 + 4*(j >> 2)
                a(f"v_mfma_f32_16x16x32_bf16 {vr(D)}, {vr(16+4*(j&3))}, {vr(T)}, {vr(D) if (r or j & 3) else 0}")
        for i in range(8):
            vload(0, i)
            if i == 0: kmm(6)
            if i == 1: kfin(6)
            if i == d - 1: kmm(7); kfin(7); publish()
        for i in range(8): vload(1, i)
        softmax(); amake(0); a.vm_wait("v0_7"); pv(0, range(8))
        for i in range(8):
            vload(2, i)
            if i == 0: amake(1)
            if i >= d - 1 and i - (d - 1) < 4:
                if i == d - 1: a.vm_wait("v1_7")
                k = i - (d - 1); pv(1, [2*k, 2*k+1])
        for i in range(8):
            vload(3, i)
            if i == 0: amake(2)
            if i >= d - 1 and i - (d - 1) < 4:
                if i == d - 1: a.vm_wait("v2_7")
                k = i - (d - 1); pv(2, [2*k, 2*k+1])
        assert d - 1 + 3 <= 7
        a.vm = vm0
    a("s_cmp_eq_u32 s6, 3\ns_cbranch_scc1 L_v3")
    vphase(dv); a("s_branch L_vlast\nL_v3:"); vphase(dv3)
    a("L_vlast:\ns_nop 1")
    for jj in range(4):
        n = (4*(jj - 3)) % 16
        for k in range(4):
            a(f"v_mov_b32_dpp v{16+4*jj+k}, v{96+k} " + (f"row_ror:{n}" if n else "quad_perm:[0,1,2,3]") + f" row_mask:0xf bank_mask:{1<<jj:#x}")
    a(f"""v_and_b32 v3, 7, v0
    v_lshlrev_b32 v3, 5, v3
    v_lshrrev_b32 v4, 4, v0
    v_lshl_add_u32 v3, v4, 2, v3
    s_mov_b32 s30, 0xff00ff00
    s_mov_b32 s31, 0xff00ff00""")
    a("L_st_tail:")
    for i2 in range(4):
        a(f"s_waitcnt vmcnt({6-2*i2})")
        for j in range(8): a(f"v_perm_b32 v{64+4*j+i2}, v{32+8*i2+4+(j>>1)}, v{32+8*i2+(j>>1)}, {SELHI if j & 1 else SELLO}")
    for j in (0, 4, 1, 5, 2, 6, 3, 7):
        D = 100 + 4*(j >> 2)
        a(f"v_mfma_f32_16x16x32_bf16 {vr(D)}, {vr(16+4*(j&3))}, {vr(64+4*j)}, {vr(D)}")
    for jh in range(2):
        for h in range(2): a(f"v_cndmask_b32 v{108+2*jh+h}, v{100+4*jh+h}, v{100+4*jh+2+h}, s[30:31]")
    for jh in range(2):
        for h in range(2): a(f"ds_add_f32 v3, v{108+2*jh+h} offset:{OACC+h*256+jh*16}")
    a("s_waitcnt lgkmcnt(0)")
    stamp(5)
    guard("s_barrier")
    Ls = a.label("up")
    if dry: a(f"s_cbranch_execz {Ls}")
    a(f"s_cmp_eq_u32 s28, 2\ns_cbranch_scc1 L_st_end\ns_cmp_eq_u32 s3, 7\ns_cbranch_scc1 L_st_end\n{Ls}:")
    a(f"s_lshl_b32 s33, s3, 13\ns_add_u32 s33, s33, {GU+7*8192}\ns_mov_b32 s32, {GUACC+256}")
    g_prep()
    if dry: a("s_cbranch_execz L_svc_tail")
    a("s_branch L_gstage\nL_st_end:"); finish()

    a(f"""L_comm:
    v_mov_b32 v4, 0
    v_mov_b32 v5, 0
    v_mov_b32 v6, 0
    v_mov_b32 v7, 0
    v_lshlrev_b32 v1, 4, v0
    ds_write_b128 v1, v[4:7]
    ds_write_b128 v1, v[4:7] offset:1024
    s_waitcnt lgkmcnt(0)
    s_barrier""")
    ws_srd()
    a(f"""v_mov_b32 v4, -1
    v_mov_b32 v5, -1
    v_mov_b32 v6, -1
    v_mov_b32 v7, -1
    v_lshrrev_b32 v8, 3, v0
    v_and_b32 v9, 7, v0
    v_lshlrev_b32 v9, 4, v9
    s_cmp_eq_u32 s28, 0
    s_cbranch_scc1 L_c_reg
    v_mul_u32_u24 v3, 5376, v8
    v_add_u32 v3, v3, v9
    s_cmp_eq_u32 s28, 2
    s_cselect_b32 s30, 16, 0
    s_add_u32 s30, s30, s29
    s_cmp_ge_u32 s30, 42
    s_cbranch_scc1 L_c_nomod
    s_lshl_b32 s30, s30, 7
    buffer_store_dwordx4 v[4:7], v3, {WS}, s30 offen offset:{MOD_OFF} sc1
    L_c_nomod:
    s_cmp_eq_u32 s28, 2
    s_cbranch_scc0 L_c_reg
    v_lshl_add_u32 v3, v8, 13, v9
    s_lshl_b32 s30, s29, 8
    s_add_u32 s30, s30, {Q_OFF}
    buffer_store_dwordx4 v[4:7], v3, {WS}, s30 offen sc1
    buffer_store_dwordx4 v[4:7], v3, {WS}, s30 offen offset:128 sc1
    L_c_reg:
    s_lshl_b32 s34, s5, 3
    s_add_u32 s34, s34, s4
    s_lshl_b32 s30, s34, 13
    s_lshl_b32 s31, s6, 11
    s_add_u32 s30, s30, s31
    s_add_u32 s30, s30, {SC_OFF}
    buffer_store_dwordx4 v[4:7], v1, {WS}, s30 offen sc1
    buffer_store_dwordx4 v[4:7], v1, {WS}, s30 offen offset:1024 sc1
    s_lshl_b32 s30, s5, 5
    s_lshl_b32 s31, s4, 2
    s_add_u32 s30, s30, s31
    s_add_u32 s30, s30, s6
    s_mul_i32 s30, s30, 1792
    s_add_u32 s30, s30, {PA_OFF}
    s_mul_i32 s31, s5, 28
    s_add_u32 s31, s31, s7
    s_mul_i32 s31, s31, 1792
    s_add_u32 s31, s31, {PD_OFF}
    s_cmp_eq_u32 s28, 2
    s_cselect_b32 s31, s30, s31
    buffer_store_dwordx4 v[4:7], v1, {WS}, s30 offen sc1
    buffer_store_dwordx4 v[4:7], v1, {WS}, s31 offen sc1
    s_mov_b32 exec_hi, 0xffff
    buffer_store_dwordx4 v[4:7], v1, {WS}, s30 offen offset:1024 sc1
    buffer_store_dwordx4 v[4:7], v1, {WS}, s31 offen offset:1024 sc1
    s_lshl_b32 s30, s34, 9
    s_lshl_b32 s31, s6, 7
    s_add_u32 s30, s30, s31
    s_add_u32 s30, s30, {ST_OFF}
    s_mov_b64 exec, 0xff
    buffer_store_dwordx4 v[4:7], v1, {WS}, s30 offen sc1
    s_mov_b64 exec, 1
    v_mov_b32 v3, 1
    s_lshl_b32 s30, s5, 2
    s_add_u32 s30, s30, 128
    v_mov_b32 v10, s30
    s_sub_u32 s31, s28, 1
    s_lshl_b32 s31, s31, 2
    v_mov_b32 v11, s31
    s_waitcnt vmcnt(0)
    ds_write_b32 v2, v3 offset:{FC}
    s_cmp_eq_u32 s28, 0
    s_cbranch_scc1 L_c_arr
    global_atomic_add v11, v3, s[60:61] sc1
    L_c_arr:
    global_atomic_add v10, v3, s[60:61] sc1
    s_cmp_eq_u32 s28, 2
    s_cbranch_scc0 L_c_noP""")
    stamp(1)
    cnt_poll("v2", [16])
    a(f"ds_write_b32 v2, v3 offset:{F0}\nL_c_noP:")
    cnt_poll("v2", [16, 32])
    a(f"s_mov_b64 exec, -1\ns_lshl_b32 s30, s5, 13\ns_lshl_b32 s31, s4, 10\ns_add_u32 s30, s30, s31\ns_add_u32 s30, s30, {Q_OFF}")
    poll([f"buffer_load_dwordx4 v[12:15], v1, {WS}, s30 offen sc1"], range(12, 16), cnt="s33")
    a(f"ds_write_b128 v1, v[12:15] offset:{QL}\nv_mov_b32 v3, 1\ns_waitcnt lgkmcnt(0)\nds_write_b32 v2, v3 offset:{FQ}")
    stamp(2)
    a("s_cmp_eq_u32 s28, 2\ns_cbranch_scc1 L_c_nomodg")
    srd(96, 36, 7168)
    a(f"""s_mul_i32 s30, s5, 896
    s_mov_b32 exec_hi, 0xffffff
    buffer_load_dwordx4 v[28:31], v1, s[96:99], s30 offen
    s_mov_b32 exec_hi, -1
    s_mul_i32 s30, s5, 5376
    s_add_u32 s30, s30, {MOD_OFF+1792}
    v_and_b32 v3, 31, v0
    v_lshlrev_b32 v8, 4, v3""")
    poll([f"buffer_load_dwordx4 {vr(12+4*k)}, {'v1' if k < 3 else 'v8'}, {WS}, s30 offen offset:{k*1024} sc1" for k in range(4)], range(12, 28), cnt="s33")
    for k in range(4): a(f"ds_write_b128 {'v1' if k < 3 else 'v8'}, {vr(12+4*k)} offset:{MODL+k*1024}")
    a(f"s_mov_b32 exec_hi, 0xffffff\nds_write_b128 v1, v[28:31] offset:{XL}\ns_mov_b32 exec_hi, -1\nL_c_nomodg:")
    a("v_mov_b32 v10, s5\nv_lshlrev_b32 v10, 2, v10\nv_add_u32 v10, 128, v10")
    cnt_poll("v10", [32])
    stamp(3)
    if dry: a("s_mov_b64 exec, 0\ns_branch L_st_tail\nL_dry2:\ns_branch L_final\nL_dry3:\ns_nop 7\ns_mov_b64 exec, -1")
    lds_spin(KDONE, 8)
    a(f"""s_lshl_b32 s34, s5, 3
    s_add_u32 s34, s34, s4
    s_lshl_b32 s30, s34, 13
    s_add_u32 s30, s30, {SC_OFF}
    s_add_u32 s32, s30, 4096
    s_lshl_b32 s35, s34, 9
    s_add_u32 s35, s35, {ST_OFF}
    v_and_b32 v3, 31, v0
    v_lshlrev_b32 v8, 4, v3""")
    poll([f"buffer_load_dwordx4 v[12:15], v8, {WS}, s35 offen sc1"] +
         [f"buffer_load_dwordx4 {vr(32+4*k)}, v1, {WS}, {'s30' if k < 4 else 's32'} offen offset:{(k&3)*1024} sc1" for k in range(8)],
         list(range(12, 16)) + list(range(32, 64)), cnt="s33")
    stamp(4)
    for k in range(8): a(f"ds_write_b128 v1, {vr(32+4*k)} offset:{SCL+k*1024}")
    a("v_mov_b32 v16, v12\nv_mov_b32 v18, v14")
    for n in (1, 2, 4, 8):
        for v in ("v16", "v18"): a(f"v_max_f32_dpp {v}, {v}, {v} row_ror:{n} row_mask:0xf bank_mask:0xf")
    for v, t in (("v16", "v3"), ("v18", "v4")): a(f"v_mov_b32 {t}, {v}\nv_permlane16_swap_b32 {t}, {v}\nv_max_f32 {v}, {v}, {t}")
    a(f"""v_sub_f32 v12, v12, v16
    v_sub_f32 v14, v14, v18
    v_mul_f32 v12, {CEXP}, v12
    v_mul_f32 v14, {CEXP}, v14
    v_exp_f32 v12, v12
    v_exp_f32 v14, v14
    v_mul_f32 v17, v12, v13
    v_mul_f32 v19, v14, v15""")
    for n in (1, 2, 4, 8):
        for v in ("v17", "v19"): a(f"v_add_f32_dpp {v}, {v}, {v} row_ror:{n} row_mask:0xf bank_mask:0xf")
    for v, t in (("v17", "v3"), ("v19", "v4")): a(f"v_mov_b32 {t}, {v}\nv_permlane16_swap_b32 {t}, {v}\nv_add_f32 {v}, {v}, {t}")
    a(f"""v_rcp_f32 v17, v17
    v_rcp_f32 v19, v19
    v_mul_f32 v16, {CEXP}, v16
    v_mul_f32 v18, {CEXP}, v18
    v_mov_b32 v3, 1
    ds_write_b128 v2, v[16:19] offset:{MS}
    s_waitcnt lgkmcnt(0)
    ds_write_b32 v2, v3 offset:{FP}
    s_mul_i32 s30, s5, {28*1792}
    s_lshl_b32 s31, s7, 6
    s_add_u32 s30, s30, s31
    s_add_u32 s68, s30, {PD_OFF}
    s_add_u32 s69, s68, {2*1792}
    s_add_u32 s70, s68, {4*1792}
    s_add_u32 s71, s68, {6*1792}
    v_lshrrev_b32 v3, 4, v0
    v_mul_u32_u24 v3, {7*1792}, v3
    v_and_b32 v4, 15, v0
    v_lshl_add_u32 v8, v4, 2, v3
    s_lshl_b32 s30, s7, 4
    v_add_u32 v9, s30, v4
    v_lshlrev_b32 v10, 2, v9
    v_lshlrev_b32 v9, 1, v9
    s_mul_i32 s72, s5, 896""")
    srd(96, 58, 7168)
    a("s_waitcnt lgkmcnt(0)\ns_barrier\ns_cmp_eq_u32 s28, 2\ns_cbranch_scc1 L_st_end\ns_barrier")
    a(f"ds_read_b32 v20, v10 offset:{X1L}\nds_read_u16 v21, v9 offset:{MODL+2688}\ns_waitcnt lgkmcnt(0)\nv_lshlrev_b32 v21, 16, v21\ns_barrier")
    stamp(5)
    a("L_final:\ns_mov_b32 s33, 0")
    L = a.label("pd"); D = a.label("pdd")
    a(f"{L}:")
    guard("\n".join(f"buffer_load_dword v{12+k}, v8, {WS}, s{68+(k>>1)} offen offset:{(k&1)*1792} sc1" for k in range(7)))
    a("s_waitcnt vmcnt(0)")
    check(range(12, 19), "v3")
    a(f"s_cbranch_vccz {D}\ns_add_u32 s33, s33, 1\ns_cmp_lt_u32 s33, {SPIN_MAX}\ns_cbranch_scc1 {L}\n{D}:")
    stamp(6)
    a("v_add_f32 v12, v12, v13\nv_add_f32 v14, v14, v15\nv_add_f32 v16, v16, v17\nv_add_f32 v12, v12, v18\nv_add_f32 v14, v14, v16\nv_add_f32 v12, v12, v14")
    xrow_reduce("v_add_f32", "v12", "v3")
    round1("v12"); a("v_mul_f32 v12, v12, v21"); round1("v12"); a("v_add_f32 v12, v12, v20\nv_cvt_pk_bf16_f32 v12, v12, v12")
    guard("s_mov_b64 exec, 0xffff\nbuffer_store_short v12, v9, s[96:99], s72 offen")
    if dry: a("s_cbranch_execz L_dry3")
    if diag:
        a("s_mov_b64 exec, -1")
        stamp(7)
        a(f"""L_finish:
        s_waitcnt lgkmcnt(0)
        s_mov_b64 exec, -1
        v_mov_b32 v4, 0""")
        for i in range(8): a(f"v_writelane_b32 v4, s{80+2*i}, {i}")
        a(f"""s_getreg_b32 s30, hwreg(HW_REG_HW_ID)
        v_lshrrev_b32 v3, 6, v0
        s_lshl_b32 s30, s2, 9
        v_lshlrev_b32 v3, 2, v0
        s_lshl_b32 s31, s81, 5
        s_add_u32 s30, s30, s31
        s_add_u32 s30, s30, {TS_OFF}
        s_mov_b64 exec, 0xff
        buffer_store_dword v4, v3, {WS}, s30 offen""")
    a("L_end:\ns_endpgm")
    body = a.text()
    if diag: body = body.replace("    s_and_b32 s4, s2, 7\n", "    s_waitcnt lgkmcnt(0)\n    s_mov_b32 s81, s3\n    s_and_b32 s4, s2, 7\n", 1)
    hdr = open("adaLN_cond__sliding_block_cached__glu_gated_glu__decode.s.ref").read().split("; Override launch")[0]
    return (hdr + f"; @launch grid=(256,1,1) block=(1024,1,1) lds={LDS_BYTES}\n.amdgcn_target \"amdgcn-amd-amdhsa--gfx950\"\n.text\n.globl {NAME}\n.p2align 8\n.type {NAME},@function\n{NAME}:\n"
            + body + f""".section .rodata,"a"
.p2align 6
.amdhsa_kernel {NAME}
  .amdhsa_next_free_vgpr 128
  .amdhsa_next_free_sgpr 102
  .amdhsa_accum_offset 128
  .amdhsa_group_segment_fixed_size 0
  .amdhsa_kernarg_size 112
  .amdhsa_user_sgpr_count 2
  .amdhsa_user_sgpr_kernarg_segment_ptr 1
  .amdhsa_system_sgpr_workgroup_id_x 1
  .amdhsa_float_denorm_mode_32 3
.end_amdhsa_kernel
""")

if __name__ == "__main__":
    kw = eval("dict(%s)" % (sys.argv[2] if len(sys.argv) > 2 else ""))
    open(sys.argv[1], "w").write(gen(**kw))
```

```python
import struct, math, sys
from asm2 import Asm
NAME = "adaLN_cond__sliding_block_cached__glu_gated_glu__decode_kernel"
def f32(x): return "0x%08x" % struct.unpack("<I", struct.pack("<f", x))[0]

MOD_OFF, Q_OFF, SC_OFF, ST_OFF, PA_OFF, PD_OFF, TS_OFF = 0x0, 0x10000, 0x20000, 0xA0000, 0xB0000, 0x120000, 0x200000
DUAL = 0x190000
CERT_OFF, XN_OFF = 0xA8000, 0xA9000
TAG = 's78'
FQ, FP, CRIT, KDONE, RC0, RC1, RC2, FC, MS, F0, XC = 0, 4, 8, 12, 16, 20, 24, 28, 32, 48, 52
OACC, GUACC, STL, X1L, XST, QL, MODL, XL, SCL, RED, GU = 0x100, 0x500, 0x80, 0x900, 0x500, 0x1000, 0x1400, 0x2200, 0x2800, 0x4800, 0x8000
LDS_BYTES = 0x24000
W0, W1, W2 = 32, 64, 96
SPIN_MAX = 1 << 20

def gen(dk=3, dv=3, dv3=4, dw=2, diag=False, dry=True, pol="nt"):
    a = Asm()
    SELLO, SELHI, HIM, CEXP = "s64", "s65", "s66", "s67"
    def vr(b, n=4): return f"v[{b}:{b+n-1}]"
    def stamp(i):
        if diag: a(f"s_memrealtime s[{80+2*i}:{81+2*i}]")
    def srd(d, p, size):
        a(f"s_mov_b32 s{d}, s{p}\ns_mov_b32 s{d+1}, s{p+1}\ns_mov_b32 s{d+2}, {size}\ns_mov_b32 s{d+3}, 0x20000")
    def lds_spin(off, target, vt="v3", st="s30", nap=True):
        L = a.label("spin"); D = a.label("spind")
        a(f"""{L}:
        ds_read_b32 {vt}, v2 offset:{off}
        s_waitcnt lgkmcnt(0)
        v_readfirstlane_b32 {st}, {vt}
        s_cmp_ge_u32 {st}, {target}
        s_cbranch_scc1 {D}
        {'s_sleep 1' if nap else ''}
        s_branch {L}
        {D}:""")
    def lds_inc(off, vt="v3"):
        a(f"v_mov_b32 {vt}, 1\ns_mov_b64 exec, 1\nds_add_u32 v2, {vt} offset:{off}\ns_mov_b64 exec, -1")
    def unpack2(lo, hi, pk):
        a(f"v_lshlrev_b32 {lo}, 16, {pk}\nv_and_b32 {hi}, {HIM}, {pk}") if lo != pk else a(f"v_and_b32 {hi}, {HIM}, {pk}\nv_lshlrev_b32 {lo}, 16, {pk}")
    def round2(x, y, t):
        a(f"v_cvt_pk_bf16_f32 {t}, {x}, {y}"); unpack2(x, y, t)
    def round1(x):
        a(f"v_cvt_pk_bf16_f32 {x}, {x}, {x}\nv_lshlrev_b32 {x}, 16, {x}")
    def transpose_inplace(Wb, t0="v4", t1="v5"):
        P = lambda i, d: (f"v{Wb+8*i+d}", f"v{Wb+8*i+4+d}")
        for i in range(4):
            e, o = P(i, i)
            a(f"v_perm_b32 {t0}, {o}, {e}, {SELLO}\nv_perm_b32 {o}, {o}, {e}, {SELHI}\nv_mov_b32 {e}, {t0}")
            for d in range(i+1, 4):
                e, o = P(i, d); e2, o2 = P(d, i)
                a(f"""v_perm_b32 {t0}, {o}, {e}, {SELLO}
                v_perm_b32 {t1}, {o}, {e}, {SELHI}
                v_perm_b32 {e}, {o2}, {e2}, {SELLO}
                v_perm_b32 {o}, {o2}, {e2}, {SELHI}
                v_mov_b32 {e2}, {t0}
                v_mov_b32 {o2}, {t1}""")
    def block_voff(v, stride):
        a(f"v_lshrrev_b32 v3, 3, v0\nv_mul_u32_u24 v3, {8*stride}, v3\nv_and_b32 {v}, 7, v0\nv_lshl_add_u32 {v}, {v}, 4, v3")
    def load_block(dst, voff, sr, soff, stride, pace=None, tag=None, fill=None):
        for i in range(8):
            if pace: a.vm_pace(pace)
            a.vmem(f"buffer_load_dwordx4 {vr(dst+4*i)}, {voff}, s[{sr}:{sr+3}], {soff} offen {pol}", tag)
            if i < 7: a(f"s_add_u32 {soff}, {soff}, {stride}")
            if fill and i in fill: fill[i]()
    def dma_block(ldsbase_s, voff, sr, soff, stride, pace=None, tag=None, fill=None):
        for i in range(8):
            a(f"s_add_u32 m0, {ldsbase_s}, {i*1024}")
            if pace: a.vm_pace(pace)
            a.vmem(f"buffer_load_dwordx4 {voff}, s[{sr}:{sr+3}], {soff} offen {pol} lds", tag)
            if i < 7: a(f"s_add_u32 {soff}, {soff}, {stride}")
            if fill and i in fill: fill[i]()
    def poll(loads, regs, vt="v3", cnt="s31"):
        L = a.label("poll"); D = a.label("polld")
        a(f"s_mov_b32 {cnt}, 0\n{L}:")
        for l in loads: a(l)
        a("s_waitcnt vmcnt(0)")
        check(regs, vt)
        a(f"""s_cbranch_vccz {D}
        s_add_u32 {cnt}, {cnt}, 1
        s_cmp_lt_u32 {cnt}, {SPIN_MAX}
        s_cbranch_scc1 {L}
        {D}:""")
        a.vm_reset()
    def poll_dual(loads, pairs, cnt="s31"):
        L = a.label("pollx"); D = a.label("pollxd")
        a(f"s_mov_b32 {cnt}, 0\n{L}:")
        for l in loads: a(l)
        a("s_waitcnt vmcnt(0)")
        for k, (x, y) in enumerate(pairs):
            a(f"v_xor_b32 v{y}, v{x}, v{y}\nv_xor_b32 v{y}, {TAG}, v{y}")
            if k: a(f"v_or_b32 v{pairs[0][1]}, v{pairs[0][1]}, v{y}")
        a(f"""v_cmp_ne_u32 vcc, 0, v{pairs[0][1]}
        s_cbranch_vccz {D}
        s_add_u32 {cnt}, {cnt}, 1
        s_cmp_lt_u32 {cnt}, {SPIN_MAX}
        s_cbranch_scc1 {L}
        {D}:""")
        a.vm_reset()
    def tag_load():
        a(f"s_load_dword {TAG}, s[62:63], {XN_OFF:#x}")
    def tag_wait():
        a(f"s_waitcnt lgkmcnt(0)\ns_add_u32 {TAG}, {TAG}, 0x9e3779b9")
    def check(regs, vt):
        r = list(regs)
        if len(r) == 1: a(f"v_cmp_eq_u32 vcc, -1, v{r[0]}"); return
        if len(r) == 2: a(f"v_max_u32 {vt}, v{r[0]}, v{r[1]}"); r = []
        else: a(f"v_max3_u32 {vt}, v{r[0]}, v{r[1]}, v{r[2]}"); r = r[3:]
        while r:
            if len(r) >= 2: a(f"v_max3_u32 {vt}, {vt}, v{r[0]}, v{r[1]}"); r = r[2:]
            else: a(f"v_max_u32 {vt}, {vt}, v{r[0]}"); r = []
        a(f"v_cmp_eq_u32 vcc, -1, {vt}")
    def cnt_poll(off, targets):
        L = a.label("cp"); D = a.label("cpd"); n = len(targets)
        a(f"s_mov_b32 s31, 0\n{L}:")
        if n == 1: a(f"global_load_dword v4, {off}, s[60:61] sc1")
        else: a(f"global_load_dwordx2 v[4:5], {off}, s[60:61] sc1")
        a("s_waitcnt vmcnt(0)")
        a(f"v_cmp_gt_u32 vcc, {targets[0]}, v4")
        if n == 2: a(f"v_cmp_gt_u32 s[32:33], {targets[1]}, v5\ns_or_b64 vcc, vcc, s[32:33]")
        a(f"""s_cbranch_vccz {D}
        s_add_u32 s31, s31, 1
        s_cmp_lt_u32 s31, {SPIN_MAX}
        s_cbranch_scc1 {L}
        {D}:""")
        a.vm_reset()
    def row_reduce(op, v, steps=(1, 2, 4, 8)):
        for n in steps: a(f"{op}_dpp {v}, {v}, {v} row_ror:{n} row_mask:0xf bank_mask:0xf")
    def xrow_reduce(op, v, t):
        a(f"v_mov_b32 {t}, {v}\nv_permlane16_swap_b32 {t}, {v}\n{op} {v}, {v}, {t}\nv_mov_b32 {t}, {v}\nv_permlane32_swap_b32 {t}, {v}\n{op} {v}, {v}, {t}")
    def guard(text):
        if not dry: a(text); return
        L = a.label("g"); a(f"s_cbranch_execz {L}"); a(text); a(f"{L}:")
    def setexec(val):
        lo, hi = val & 0xffffffff, val >> 32
        return f"s_mov_b32 exec_lo, {lo:#x}\ns_mov_b32 exec_hi, {hi:#x}"
    def finish(): a("s_branch L_finish" if diag else "s_endpgm")

    a(f"""
    s_cmp_ge_u32 s2, 256
    s_cbranch_scc1 L_end
    s_load_dwordx16 s[36:51], s[0:1], 0
    s_load_dwordx8 s[52:59], s[0:1], 64
    s_load_dwordx4 s[60:63], s[0:1], 96
    """)
    if diag:
        for i in range(1, 8): a(f"s_mov_b32 s{80+2*i}, 0")
    stamp(0)
    a(f"""
    v_lshrrev_b32 v1, 6, v0
    v_and_b32 v0, 63, v0
    v_mov_b32 v2, 0
    v_readfirstlane_b32 s3, v1
    s_and_b32 s4, s2, 7
    s_bfe_u32 s5, s2, 0x30003
    s_lshr_b32 s6, s2, 6
    s_mov_b32 s28, 0
    s_mov_b32 s29, 0
    s_lshl_b32 s7, s4, 2
    s_add_u32 s7, s7, s6
    s_sub_u32 s7, s7, 4
    s_cmp_ge_u32 s4, 2
    s_cbranch_scc1 L_typed
    s_lshl_b32 s7, s4, 1
    s_add_u32 s7, s7, s6
    s_cmp_eq_u32 s6, 1
    s_cbranch_scc1 L_typed
    s_cmp_eq_u32 s6, 0
    s_cbranch_scc0 L_typeP
    s_mov_b32 s28, 1
    s_lshl_b32 s29, s5, 1
    s_add_u32 s29, s29, s4
    s_branch L_typed
    L_typeP:
    s_mov_b32 s28, 2
    s_sub_u32 s29, s7, 2
    s_lshl_b32 s29, s29, 3
    s_add_u32 s29, s29, s5
    L_typed:
    s_mov_b32 {SELLO}, 0x05040100
    s_mov_b32 {SELHI}, 0x07060302
    s_mov_b32 {HIM}, 0xffff0000
    s_mov_b32 {CEXP}, {f32(math.log2(math.e)/16)}
    s_cmp_lt_u32 s3, 8
    s_cbranch_scc1 L_stream
    s_cmp_eq_u32 s3, 15
    s_cbranch_scc1 L_comm
    """)
    WS = "s[24:27]"
    def ws_srd(): srd(24, 62, hex(0x300000 if diag else 0x200000))

    a("s_sub_u32 s3, s3, 8\ns_barrier\ns_waitcnt lgkmcnt(0)")
    ws_srd()
    a(f"""
    v_lshrrev_b32 v3, 4, v0
    v_lshlrev_b32 v3, 1, v3
    v_and_b32 v4, 1, v0
    v_add_u32 v3, v3, v4
    v_lshlrev_b32 v6, 4, v3
    s_lshl_b32 s30, s3, 7
    v_add_u32 v6, s30, v6
    v_bfe_u32 v7, v0, 1, 3
    v_lshlrev_b32 v31, 4, v0
    s_cmp_eq_u32 s28, 0
    s_cbranch_scc1 L_svc_w
    """)
    a('s_setprio 2'); tag_load(); srd(68, 56, 448*5376); srd(8, 54, 7168)
    a("s_cmp_eq_u32 s28, 2\ns_cbranch_scc1 L_svc_P")

    def gemv8_finish(Wb, red, cnt):
        for j in range(8): a(f"v_mfma_f32_16x16x32_bf16 {vr(Wb+4*j)}, v[12:15], {vr(Wb+4*j)}, 0")
        for j in range(8):
            D = Wb + 4*j
            a(f"v_add_f32_dpp v{16+j}, v{D+1}, v{D} row_ror:8 row_mask:0xf bank_mask:0x3")
            a(f"v_add_f32_dpp v{16+j}, v{D+2}, v{D+3} row_ror:8 row_mask:0xf bank_mask:0xc")
        a(f"""s_lshl_b32 s30, s3, 11
        v_add_u32 v3, s30, v31
        ds_write_b128 v3, v[16:19] offset:{red}
        ds_write_b128 v3, v[20:23] offset:{red+1024}
        s_waitcnt lgkmcnt(0)""")
        lds_inc(cnt)
    def reduce_publish(red, cnt, rowstride, soff_code):
        lds_spin(cnt, 7, nap=False); stamp(7)
        for rnd, ws_ in enumerate([range(0, 4), range(4, 7)]):
            for k, w in enumerate(ws_):
                a(f"ds_read_b128 {vr(W2+8*k)}, v31 offset:{red+w*2048}\nds_read_b128 {vr(W2+8*k+4)}, v31 offset:{red+w*2048+1024}")
            a("s_waitcnt lgkmcnt(0)")
            for k, w in enumerate(ws_):
                for j in range(8):
                    if w == 0: a(f"v_mov_b32 v{16+j}, v{W2+j}")
                    else: a(f"v_add_f32 v{16+j}, v{16+j}, v{W2+8*k+j}")
        for d in range(4): a(f"v_cvt_pk_bf16_f32 v{24+d}, v{16+2*d}, v{17+2*d}")
        for d in range(4): a(f"v_xor_b32 v{16+d}, {TAG}, v{24+d}")
        a(f"v_lshrrev_b32 v3, 3, v0\nv_mul_u32_u24 v3, {rowstride}, v3\nv_and_b32 v4, 7, v0\nv_lshl_add_u32 v3, v4, 4, v3")
        a(soff_code)
        a.vmem(f"buffer_store_dwordx4 v[24:27], v3, {WS}, s33 offen sc1")
        a(f"s_add_u32 s33, s33, {DUAL}")
        a.vmem(f"buffer_store_dwordx4 v[16:19], v3, {WS}, s33 offen sc1")
    def mod_issue(blk_code, creg=8):
        block_voff("v1", 5376)
        a(f"s_mul_i32 s34, s3, {64*5376}")
        a(blk_code)
        a("s_lshl_b32 s30, s35, 7\ns_add_u32 s34, s34, s30")
        a("v_mul_u32_u24 v3, 896, v7\nv_add_u32 v3, v3, v6")
        a.vmem(f"buffer_load_dwordx4 {vr(creg)}, v3, s[8:11], 0 offen", "c")
        load_block(W2, "v1", 68, "s34", 5376, tag="wm")
    def mod_compute(red, cnt, creg=8, skip=None):
        a.vm_wait("c")
        for d in range(4): unpack2(f"v{16+2*d}", f"v{17+2*d}", f"v{creg+d}")
        T = lambda i: 24+i if i < 4 else creg+i-4
        for i in range(8): a(f"v_mul_f32 v{T(i)}, {f32(-math.log2(math.e))}, v{16+i}")
        for i in range(8): a(f"v_exp_f32 v{T(i)}, v{T(i)}")
        for i in range(8): a(f"v_add_f32 v{T(i)}, 1.0, v{T(i)}")
        for i in range(8): a(f"v_rcp_f32 v{T(i)}, v{T(i)}")
        for i in range(8): a(f"v_mul_f32 v{16+i}, v{16+i}, v{T(i)}")
        for d in range(4): a(f"v_cvt_pk_bf16_f32 v{12+d}, v{16+2*d}, v{17+2*d}")
        a.vm_wait("wm")
        transpose_inplace(W2)
        gemv8_finish(W2, red, cnt)
        L = a.label("nored")
        a(f"s_cmp_lg_u32 s3, 0\ns_cbranch_scc1 {L}")
        if skip: a(f"{skip}\ns_cbranch_scc1 {L}")
        reduce_publish(red, cnt, 5376, f"s_lshl_b32 s33, s35, 7\ns_add_u32 s33, s33, {MOD_OFF}")
        a(f"{L}:")

    a.vm_reset()
    mod_issue("s_mov_b32 s35, s29")
    tag_wait(); lds_inc(CRIT)
    mod_compute(RED, RC0)
    stamp(1)
    a("s_branch L_svc_w")

    a("L_svc_P:")
    a.vm_reset()
    srd(72, 42, 448*8192); srd(96, 36, 7168)
    a("v_mul_u32_u24 v3, 896, v7\nv_add_u32 v3, v3, v6")
    a.vmem("buffer_load_dwordx4 v[8:11], v3, s[96:99], 0 offen", "x")
    block_voff("v1", 8192)
    a(f"s_mul_i32 s34, s3, {64*8192}\ns_lshl_b32 s30, s29, 8\ns_add_u32 s34, s34, s30\ns_add_u32 s35, s34, 128")
    load_block(W0, "v1", 72, "s34", 8192, tag="q0")
    load_block(W1, "v1", 72, "s35", 8192, tag="q1")
    mod_issue("s_add_u32 s35, s29, 16\ns_min_u32 s35, s35, 41", creg=12)
    tag_wait()
    a.vm_wait("x")
    def red8(v):
        a(f"v_add_f32_dpp {v}, {v}, {v} quad_perm:[1,0,3,2] row_mask:0xf bank_mask:0xf")
        xrow_reduce("v_add_f32", v, "v3")
    for d in range(4): unpack2(f"v{16+2*d}", f"v{17+2*d}", f"v{8+d}")
    a("v_add_f32 v24, v16, v17")
    for i in range(2, 8): a(f"v_add_f32 v24, v24, v{16+i}")
    red8("v24")
    a(f"v_mul_f32 v24, {f32(1/64)}, v24\nv_mov_b32 v25, 0")
    for i in range(8): a(f"v_sub_f32 v3, v{16+i}, v24\nv_fmac_f32 v25, v3, v3")
    red8("v25")
    a(f"""s_lshl_b32 s30, s3, 3
    v_lshlrev_b32 v26, 6, v7
    v_add_u32 v3, s30, v26
    ds_write_b64 v3, v[24:25] offset:{XST}
    v_lshrrev_b32 v3, 4, v0
    v_and_b32 v4, 1, v0
    v_lshl_add_u32 v27, v3, 1, v4
    v_lshl_add_u32 v26, v27, 3, v26
    v_cmp_gt_u32 vcc, 7, v27
    v_mov_b32 v4, {f32(64.0)}
    v_cndmask_b32 v27, 0, v4, vcc
    s_waitcnt lgkmcnt(0)""")
    lds_inc(XC); lds_spin(XC, 7, nap=False)
    a(f"ds_read_b64 v[28:29], v26 offset:{XST}\ns_waitcnt lgkmcnt(0)\nv_mov_b32 v24, v28")
    red8("v24")
    a(f"v_mul_f32 v24, {f32(1/7)}, v24\nv_sub_f32 v28, v28, v24\nv_mul_f32 v28, v28, v28\nv_fma_f32 v25, v28, v27, v29")
    red8("v25")
    a(f"v_mul_f32 v25, {f32(1/448)}, v25")
    round2("v24", "v25", "v3")
    a(f"v_add_f32 v25, {f32(1e-5)}, v25"); round1("v25")
    a("v_sqrt_f32 v25, v25"); round1("v25")
    a("v_rcp_f32 v25, v25")
    for i in range(8): a(f"v_sub_f32 v{16+i}, v{16+i}, v24")
    for d in range(4): round2(f"v{16+2*d}", f"v{17+2*d}", "v3")
    for i in range(8): a(f"v_mul_f32 v{16+i}, v{16+i}, v25")
    for d in range(4): a(f"v_cvt_pk_bf16_f32 v{8+d}, v{16+2*d}, v{17+2*d}")
    a.vm_wait("q0"); transpose_inplace(W0)
    a.vm_wait("q1"); transpose_inplace(W1)
    mod_compute(RED, RC0, creg=12, skip="s_cmp_ge_u32 s29, 26")
    stamp(5)
    a(f"v_mul_u32_u24 v30, 5376, v7\nv_add_u32 v30, v30, v6\ns_mov_b32 s32, {DUAL}")
    poll_dual([f"buffer_load_dwordx4 v[16:19], v30, {WS}, 0 offen offset:{MOD_OFF} sc1",
               f"buffer_load_dwordx4 v[20:23], v30, {WS}, 0 offen offset:{MOD_OFF+896} sc1",
               f"buffer_load_dwordx4 {vr(W2)}, v30, {WS}, s32 offen offset:{MOD_OFF} sc1",
               f"buffer_load_dwordx4 {vr(W2+4)}, v30, {WS}, s32 offen offset:{MOD_OFF+896} sc1"],
              [(16+k, W2+k) for k in range(8)])
    lds_inc(CRIT)
    stamp(1)
    for d in range(4):
        unpack2("v28", "v29", f"v{20+d}")
        a("v_add_f32 v28, 1.0, v28\nv_add_f32 v29, 1.0, v29"); round2("v28", "v29", "v3")
        unpack2("v24", "v25", f"v{8+d}")
        a("v_mul_f32 v24, v24, v28\nv_mul_f32 v25, v25, v29"); round2("v24", "v25", "v3")
        unpack2("v28", "v29", f"v{16+d}")
        a(f"v_add_f32 v24, v24, v28\nv_add_f32 v25, v25, v29\nv_cvt_pk_bf16_f32 v{12+d}, v24, v25")
    gemv8_finish(W0, GU, RC1)
    gemv8_finish(W1, GU + 14336, RC2)
    a("s_cmp_lg_u32 s3, 0\ns_cbranch_scc1 L_pq1")
    reduce_publish(GU, RC1, 8192, f"s_lshl_b32 s33, s29, 8\ns_add_u32 s33, s33, {Q_OFF}")
    a("L_pq1:\ns_cmp_lg_u32 s3, 1\ns_cbranch_scc1 L_pq2")
    reduce_publish(GU + 14336, RC2, 8192, f"s_lshl_b32 s33, s29, 8\ns_add_u32 s33, s33, {Q_OFF+128}")
    a("L_pq2:")
    stamp(2)

    a("L_svc_w:\ns_setprio 0\ns_waitcnt vmcnt(0)")
    a.vm_reset()
    srd(8, 44, 4096*896); srd(12, 52, 1792*896); srd(16, 48, 448*3584); srd(20, 50, 448*3584)
    block_voff("v1", 896); block_voff("v8", 3584)
    a(f"""s_lshl_b32 s30, s4, 9
    s_lshl_b32 s31, s6, 6
    s_add_u32 s30, s30, s31
    s_mul_i32 s34, s30, 896
    s_lshl_b32 s31, s3, 7
    s_add_u32 s34, s34, s31
    s_add_u32 s35, s34, {256*896}
    s_cmp_eq_u32 s28, 2
    s_cbranch_scc1 L_svc_wo
    s_mul_i32 s100, s3, {64*3584}
    s_lshl_b32 s30, s7, 7
    s_add_u32 s100, s100, s30
    s_mov_b32 s101, s100
    s_lshl_b32 s33, s3, 13
    s_add_u32 s33, s33, {GU}""")
    dma_block("s33", "v8", 16, "s100", 3584, pace=dw)
    a(f"s_add_u32 s33, s33, {7*8192}")
    dma_block("s33", "v8", 20, "s101", 3584, pace=dw)
    a(f"s_mul_i32 s100, s7, {64*896}\ns_add_u32 s100, s100, s31")
    load_block(W2, "v1", 12, "s100", 896, pace=dw, tag="wd")
    a("L_svc_wo:")
    load_block(W0, "v1", 8, "s34", 896, pace=dw, tag="wo0", fill={dw: lambda: (a.vm_wait("wd"), transpose_inplace(W2))})
    load_block(W1, "v1", 8, "s35", 896, pace=dw, tag="wo1", fill={dw: lambda: (a.vm_wait("wo0"), transpose_inplace(W0))})
    a.vm_wait("wo1"); transpose_inplace(W1)
    a(f"""v_lshrrev_b32 v3, 4, v0
    v_and_b32 v4, 1, v0
    v_lshl_add_u32 v4, v3, 1, v4
    v_bfe_u32 v5, v0, 1, 2
    v_lshlrev_b32 v5, 4, v5
    v_lshl_add_u32 v9, v4, 6, v5
    v_and_b32 v5, 7, v0
    v_lshlrev_b32 v5, 5, v5
    v_lshrrev_b32 v11, 5, v0
    v_lshl_add_u32 v11, v11, 4, v5
    s_lshl_b32 s30, s5, 5
    s_lshl_b32 s31, s4, 2
    s_add_u32 s31, s31, s6
    s_add_u32 s31, s31, s30
    s_mul_i32 s34, s31, 1792
    s_lshl_b32 s33, s3, 8
    s_add_u32 s34, s34, s33
    s_add_u32 s34, s34, {PA_OFF}
    s_mul_i32 s35, s30, 1792
    s_add_u32 s35, s35, s33
    s_add_u32 s35, s35, {PA_OFF}
    s_mul_i32 s100, s5, 28
    s_add_u32 s100, s100, s7
    s_mul_i32 s100, s100, 1792
    s_add_u32 s100, s100, s33
    s_add_u32 s100, s100, {PD_OFF}
    v_mul_u32_u24 v1, 1792, v3
    v_and_b32 v4, 15, v0
    v_lshl_add_u32 v1, v4, 4, v1
    v_lshl_add_u32 v8, v4, 2, v3
    s_lshl_b32 s30, s3, 6
    v_add_u32 v8, s30, v8""")
    for r in range(1, 8): a(f"s_add_u32 s{68+r}, s35, {r*4*1792}")
    a("s_mov_b32 s68, s35")
    stamp(3)
    a("s_setprio 3\nL_svc_tail:")
    guard("s_barrier")
    a(f"""ds_read_b128 v[20:23], v9 offset:{OACC}
    ds_read_b128 v[24:27], v9 offset:{OACC+512}
    s_waitcnt lgkmcnt(1)
    v_cvt_f32_f64 v20, v[20:21]
    v_cvt_f32_f64 v22, v[22:23]
    s_waitcnt lgkmcnt(0)
    v_cvt_f32_f64 v24, v[24:25]
    v_cvt_pk_bf16_f32 v12, v20, v22
    v_cvt_f32_f64 v26, v[26:27]
    v_cvt_pk_bf16_f32 v16, v24, v26""")
    for A0 in (12, 16):
        for d in range(1, 4): a(f"v_mov_b32_dpp v{A0+d}, v{A0} row_ror:{16-2*d} row_mask:0xf bank_mask:0xf")
    for j in range(8): a(f"v_mfma_f32_16x16x32_bf16 {vr(W0+4*j)}, v[12:15], {vr(W0+4*j)}, 0")
    for j in range(8): a(f"v_mfma_f32_16x16x32_bf16 {vr(W0+4*j)}, v[16:19], {vr(W1+4*j)}, {vr(W0+4*j)}")
    for j in range(8): a(f"v_add_f32_dpp v{20+(j&3)}, v{W0+4*j+1}, v{W0+4*j} row_ror:8 row_mask:{1<<(2*(j>>2)):#x} bank_mask:0x3")
    guard(setexec(0x000000FF000000FF) + f"\nbuffer_store_dwordx4 v[20:23], v11, {WS}, s34 offen sc1\ns_mov_b64 exec, -1")
    stamp(4)
    Lp = a.label("notP")
    if dry: a(f"s_cbranch_execz {Lp}")
    a(f"s_cmp_lg_u32 s28, 2\ns_cbranch_scc1 {Lp}"); finish(); a(f"{Lp}:")
    gl = "\n".join(f"buffer_load_dwordx4 {vr(W0+4*r)}, v1, {WS}, s{68+r} offen sc1" for r in range(8))
    guard(gl)
    a(f"s_lshl_b32 s33, s3, 13\ns_add_u32 s33, s33, {GU}\ns_mov_b32 s32, {GUACC}")
    def g_prep():
        a("v_lshlrev_b32 v3, 4, v0\nv_add_u32 v3, s33, v3")
        for i in range(8): a(f"ds_read_b128 {vr(W1+4*i)}, v3 offset:{i*1024}")
        a(f"""v_lshrrev_b32 v3, 4, v0
        v_and_b32 v4, 1, v0
        v_lshl_add_u32 v3, v3, 1, v4
        v_bfe_u32 v4, v0, 1, 2
        v_lshlrev_b32 v4, 1, v4
        v_lshl_add_u32 v12, v3, 3, v4
        s_lshl_b32 s30, s3, 6
        v_add_u32 v13, s30, v12
        v_lshlrev_b32 v3, 1, v13
        ds_read_b32 v14, v3 offset:{MODL+896}
        ds_read_b32 v16, v3 offset:{MODL+1792}
        v_lshlrev_b32 v13, 2, v13
        v_lshlrev_b32 v12, 3, v12
        v_and_b32 v3, 7, v0
        v_cmp_gt_u32 vcc, 7, v3
        v_cndmask_b32 v18, 0, v3, vcc
        v_mov_b32 v4, {f32(1/7)}
        v_cndmask_b32 v20, 0, v4, vcc
        v_mov_b32 v4, {f32(1/448)}
        v_cndmask_b32 v21, 0, v4, vcc
        v_lshlrev_b32 v19, 8, v18
        v_lshlrev_b32 v18, 3, v18
        v_lshlrev_b32 v3, 5, v3
        v_lshrrev_b32 v4, 5, v0
        v_lshl_add_u32 v3, v4, 4, v3
        v_bfe_u32 v4, v0, 3, 1
        v_lshl_add_u32 v3, v4, 2, v3
        v_lshlrev_b32 v3, 1, v3
        v_add_u32 v22, s32, v3
        s_waitcnt lgkmcnt(0)""")
        unpack2("v14", "v15", "v14"); unpack2("v16", "v17", "v16")
        a("v_add_f32 v16, 1.0, v16\nv_add_f32 v17, 1.0, v17"); round2("v16", "v17", "v3")
        transpose_inplace(W1)
    g_prep()
    a(f"""v_lshlrev_b32 v3, 1, v8
    ds_read_u16 v23, v3 offset:{MODL}
    ds_read_u16 v24, v3 offset:{XL}
    v_lshlrev_b32 v25, 2, v8
    v_lshrrev_b32 v26, 5, v0
    v_lshlrev_b32 v26, 2, v26
    s_lshl_b32 s30, s3, 3
    v_add_u32 v26, s30, v26
    s_waitcnt lgkmcnt(0)
    v_lshlrev_b32 v23, 16, v23
    v_lshlrev_b32 v24, 16, v24
    s_mov_b32 s31, 0""")
    L = a.label("pa"); D = a.label("pad")
    a(f"{L}:\ns_waitcnt vmcnt(0)")
    check(range(W0, W0+32), "v3")
    a(f"s_cbranch_vccz {D}\ns_add_u32 s31, s31, 1\ns_cmp_ge_u32 s31, {SPIN_MAX}\ns_cbranch_scc1 {D}")
    a(gl); a(f"s_branch {L}\n{D}:")
    stamp(5)
    for st in (16, 8, 4):
        for k in range(0, st, 2): a(f"v_pk_add_f32 v[{W0+k}:{W0+k+1}], v[{W0+k}:{W0+k+1}], v[{W0+st+k}:{W0+st+k+1}]")
    a(f"""v_permlane32_swap_b32 v{W0}, v{W0+2}
    v_permlane32_swap_b32 v{W0+1}, v{W0+3}
    v_add_f32 v{W0}, v{W0}, v{W0+2}
    v_add_f32 v{W0+1}, v{W0+1}, v{W0+3}
    v_permlane16_swap_b32 v{W0}, v{W0+1}
    v_add_f32 v27, v{W0}, v{W0+1}""")
    round1("v27"); a("v_mul_f32 v27, v27, v23"); round1("v27"); a("v_add_f32 v27, v27, v24"); round1("v27")
    a(f"""ds_write_b32 v25, v27 offset:{X1L}
    v_readfirstlane_b32 s30, v27
    v_subrev_f32 v28, s30, v27
    v_mul_f32 v29, v28, v28
    v_permlane32_swap_b32 v28, v29
    v_add_f32 v28, v28, v29""")
    row_reduce("v_add_f32", "v28")
    a("v_mov_b32 v29, v28\nv_permlane16_swap_b32 v28, v29\nv_add_f32 v28, v28, v29")
    a(f"ds_write_b32 v26, v28 offset:{STL}\ns_waitcnt lgkmcnt(0)")
    a("L_gstage:")
    guard("s_barrier")
    stamp(7)
    a(f"""ds_read_b64 v[24:25], v18 offset:{STL}
    ds_read_b32 v26, v19 offset:{X1L}
    ds_read_b64 v[28:29], v13 offset:{X1L}
    s_waitcnt lgkmcnt(1)
    v_mul_f32 v3, {f32(1/64)}, v24
    v_add_f32 v26, v26, v3
    v_fma_f32 v25, -v3, v24, v25
    v_mul_f32 v27, v26, v20""")
    row_reduce("v_add_f32", "v27", (1, 2, 4))
    a(f"v_sub_f32 v26, v26, v27\nv_mul_f32 v26, v26, v26\nv_fmac_f32 v25, {f32(64.0)}, v26\nv_mul_f32 v25, v25, v21")
    row_reduce("v_add_f32", "v25", (1, 2, 4))
    round2("v27", "v25", "v3")
    a(f"v_add_f32 v25, {f32(1e-5)}, v25\ns_waitcnt lgkmcnt(0)\nv_sub_f32 v28, v28, v27\nv_cvt_pk_bf16_f32 v25, v25, v25\nv_sub_f32 v29, v29, v27\nv_lshlrev_b32 v25, 16, v25")
    a("v_sqrt_f32 v25, v25"); round2("v28", "v29", "v3"); round1("v25")
    a("v_rcp_f32 v25, v25\nv_mul_f32 v28, v28, v25\nv_mul_f32 v29, v29, v25"); round2("v28", "v29", "v3")
    a("v_mul_f32 v28, v28, v16\nv_mul_f32 v29, v29, v17"); round2("v28", "v29", "v3")
    a("v_add_f32 v28, v28, v14\nv_add_f32 v29, v29, v15\nv_cvt_pk_bf16_f32 v24, v28, v29")
    for d in range(1, 4): a(f"v_mov_b32_dpp v{24+d}, v24 row_ror:{16-2*d} row_mask:0xf bank_mask:0xf")
    for j in range(8): a(f"v_mfma_f32_16x16x32_bf16 {vr(W1+4*j)}, v[24:27], {vr(W1+4*j)}, 0")
    for j in range(8):
        Dj = W1 + 4*j; up = j & 1
        a(f"v_add_f32_dpp v{28+((j>>1)&1)}, v{Dj+1-up}, v{Dj+up} row_ror:8 row_mask:{1<<(2*(j>>2)):#x} bank_mask:{0xc if up else 0x3:#x}")
    a("v_cvt_f64_f32 v[24:25], v28\nv_cvt_f64_f32 v[26:27], v29")
    guard(setexec(0x0000FFFF0000FFFF) + "\nds_add_f64 v22, v[24:25]\nds_add_f64 v22, v[26:27] offset:16\ns_mov_b64 exec, -1\ns_waitcnt lgkmcnt(0)\ns_barrier")
    Lq = a.label("isgate")
    if dry: a(f"s_cbranch_execz {Lq}")
    a(f"s_cmp_eq_u32 s32, {GUACC}\ns_cbranch_scc1 {Lq}"); finish(); a(f"{Lq}:")
    a(f"ds_read_b128 v[24:27], v12 offset:{GUACC}\nds_read_b128 v[28:31], v12 offset:{GUACC+512}\ns_waitcnt lgkmcnt(1)")
    a("v_cvt_f32_f64 v24, v[24:25]\nv_cvt_f32_f64 v25, v[26:27]")
    round2("v24", "v25", "v3")
    a(f"v_mul_f32 v24, {f32(-math.log2(math.e))}, v24\nv_mul_f32 v25, {f32(-math.log2(math.e))}, v25\nv_exp_f32 v24, v24\nv_exp_f32 v25, v25\ns_waitcnt lgkmcnt(0)")
    a("v_cvt_f32_f64 v28, v[28:29]\nv_cvt_f32_f64 v29, v[30:31]")
    a("v_cvt_pk_bf16_f32 v3, v28, v29\nv_add_f32 v24, 1.0, v24\nv_add_f32 v25, 1.0, v25\nv_rcp_f32 v24, v24\nv_rcp_f32 v25, v25")
    unpack2("v28", "v29", "v3"); round2("v24", "v25", "v3")
    a("v_mul_f32 v24, v24, v28\nv_mul_f32 v25, v25, v29\nv_cvt_pk_bf16_f32 v24, v24, v25")
    for d in range(1, 4): a(f"v_mov_b32_dpp v{24+d}, v24 row_ror:{16-2*d} row_mask:0xf bank_mask:0xf")
    for j in range(8): a(f"v_mfma_f32_16x16x32_bf16 {vr(W2+4*j)}, v[24:27], {vr(W2+4*j)}, 0")
    for j in range(8): a(f"v_add_f32_dpp v{28+(j&3)}, v{W2+4*j+1}, v{W2+4*j} row_ror:8 row_mask:{1<<(2*(j>>2)):#x} bank_mask:0x3")
    guard(setexec(0x000000FF000000FF) + f"\nbuffer_store_dwordx4 v[28:31], v11, {WS}, s100 offen sc1\ns_mov_b64 exec, -1")
    stamp(6)
    if dry: a("s_cbranch_execz L_dry2")
    finish()

    a("L_stream:")
    a(f"""s_lshl_b32 s30, s5, 3
    s_add_u32 s30, s30, s4
    s_lshl_b32 s31, s30, 22
    s_add_u32 s31, s31, 0x300000
    v_and_b32 v3, 7, v0
    v_lshlrev_b32 v1, 9, v3
    v_bfe_u32 v4, v0, 3, 1
    v_lshl_add_u32 v1, v4, 4, v1
    v_lshrrev_b32 v4, 4, v0
    v_lshl_add_u32 v1, v4, 5, v1
    v_lshrrev_b32 v4, 3, v0
    v_lshlrev_b32 v4, 12, v4
    v_lshl_add_u32 v14, v3, 4, v4
    s_lshl_b32 s32, s6, 15
    s_lshl_b32 s33, s3, 12
    s_add_u32 s34, s32, s33
    s_lshl_b32 s32, s6, 7
    s_lshl_b32 s33, s3, 15
    s_add_u32 s35, s32, s33
    s_barrier
    s_waitcnt lgkmcnt(0)
    s_add_u32 s8, s38, s31
    s_addc_u32 s9, s39, 0
    s_mov_b32 s10, 0x100000
    s_mov_b32 s11, 0x20000
    s_add_u32 s12, s40, s31
    s_addc_u32 s13, s41, 0
    s_mov_b32 s14, 0x100000
    s_mov_b32 s15, 0x20000""")
    ws_srd()
    a("s_cmp_eq_u32 s28, 0\ns_cbranch_scc1 L_st_go")
    lds_spin(CRIT, 7)
    a("L_st_go:")
    a.vm_reset()
    kslot = lambda t: 32 + 16*(t % 6)
    nk = [0]
    def kload(t, j):
        if nk[0] >= dk: a.vm_pace(dk)
        nk[0] += 1
        a.vmem(f"buffer_load_dwordx4 {vr(kslot(t)+4*j)}, v1, s[8:11], s34 offen offset:{j*128} {pol}", f"k{t}")
        if j == 3: a(f"s_add_u32 s34, s34, {4*32768}")
    def kmm(t):
        a.vm_wait(f"k{t}")
        D = 4 + 4*(t & 1)
        for j in range(4): a(f"v_mfma_f32_16x16x32_bf16 {vr(D)}, {vr(16+4*j)}, {vr(kslot(t)+4*j)}, {vr(D) if j else 0}")
    def kfin(t):
        D = 4 + 4*(t & 1); up = t & 1
        for h in range(2):
            a(f"v_add_f32_dpp v{12+h}, v{D+h+(0 if up else 2)}, v{D+h+(2 if up else 0)} row_ror:8 row_mask:{1<<(t>>1):#x} bank_mask:{0xc if up else 0x3:#x}")
    for t in range(6):
        for j in range(4): kload(t, j)
    stamp(1)
    lds_spin(FQ, 1)
    stamp(2)
    a(f"""v_and_b32 v3, 1, v0
    v_lshlrev_b32 v3, 9, v3
    v_bfe_u32 v4, v0, 1, 1
    v_lshl_add_u32 v3, v4, 4, v3
    v_lshrrev_b32 v4, 4, v0
    v_lshl_add_u32 v3, v4, 5, v3""")
    for j in range(4): a(f"ds_read_b128 {vr(16+4*j)}, v3 offset:{QL+j*128}")
    a("s_waitcnt lgkmcnt(0)")
    kmm(0); kload(6, 0); kmm(1); kfin(0); kload(6, 1); kfin(1); kmm(2); kload(6, 2); kfin(2); kmm(3); kload(6, 3); kfin(3)
    kload(7, 0); kmm(4); kload(7, 1); kfin(4); kmm(5); kload(7, 2); kfin(5); kload(7, 3)
    vreg = lambda r: 64 if r % 2 == 0 else 32
    def vphase(d):
        vm0 = list(a.vm)
        def vload(r, i):
            a.vm_pace(d)
            a.vmem(f"buffer_load_dwordx4 {vr(vreg(r)+4*i)}, v14, s[12:15], s35 offen offset:{i*512} {pol}", f"v{r}_{i}")
            if i == 7: a(f"s_add_u32 s35, s35, {8*32768}")
        def publish():
            a(f"""v_cvt_pk_bf16_f32 v96, v12, v13
            s_lshl_b32 s30, s5, 3
            s_add_u32 s30, s30, s4
            s_lshl_b32 s31, s6, 3
            s_add_u32 s31, s31, s3
            v_min_u32 v96, -2, v96
            s_lshl_b32 s32, s30, 13
            s_lshl_b32 s33, s31, 8
            s_add_u32 s32, s32, s33
            s_add_u32 s32, s32, {SC_OFF}
            v_lshlrev_b32 v3, 2, v0""")
            a.vmem(f"buffer_store_dword v96, v3, {WS}, s32 offen sc1")
            unpack2("v12", "v13", "v96")
            a("v_mov_b32 v100, v12\nv_mov_b32 v102, v13")
            for n in (1, 2, 4, 8):
                for v in ("v100", "v102"): a(f"v_max_f32_dpp {v}, {v}, {v} row_ror:{n} row_mask:0xf bank_mask:0xf")
            xrow_reduce("v_max_f32", "v100", "v3"); xrow_reduce("v_max_f32", "v102", "v97")
            a(f"""v_sub_f32 v101, v12, v100
            v_sub_f32 v103, v13, v102
            v_mul_f32 v101, {CEXP}, v101
            v_mul_f32 v103, {CEXP}, v103
            v_exp_f32 v101, v101
            v_exp_f32 v103, v103""")
            for n in (1, 2, 4, 8):
                for v in ("v101", "v103"): a(f"v_add_f32_dpp {v}, {v}, {v} row_ror:{n} row_mask:0xf bank_mask:0xf")
            xrow_reduce("v_add_f32", "v101", "v3"); xrow_reduce("v_add_f32", "v103", "v97")
            a(f"s_lshl_b32 s32, s30, 9\ns_lshl_b32 s33, s31, 4\ns_add_u32 s32, s32, s33\ns_add_u32 s32, s32, {ST_OFF}\ns_mov_b64 exec, 1")
            a.vmem(f"buffer_store_dwordx4 v[100:103], v2, {WS}, s32 offen sc1")
            a("s_mov_b64 exec, -1")
            lds_inc(KDONE)
            stamp(3)
            for k in range(16, 32): a(f"v_mov_b32 v{k}, 0")
        def softmax():
            lds_spin(FP, 1)
            stamp(4)
            a(f"""v_lshrrev_b32 v3, 4, v0
            v_bfe_u32 v4, v0, 1, 1
            v_lshl_add_u32 v3, v3, 1, v4
            v_lshlrev_b32 v3, 8, v3
            v_bfe_u32 v4, v0, 2, 2
            v_lshl_add_u32 v3, v4, 6, v3
            s_and_b32 s30, s3, 3
            s_lshl_b32 s30, s30, 11
            s_lshr_b32 s31, s3, 2
            s_lshl_b32 s31, s31, 5
            s_add_u32 s30, s30, s31
            v_add_u32 v3, s30, v3
            ds_read_b128 v[108:111], v3 offset:{SCL}
            ds_read_b128 v[112:115], v3 offset:{SCL+16}
            v_and_b32 v4, 1, v0
            v_lshlrev_b32 v5, 3, v4
            ds_read_b64 v[116:117], v5 offset:{MS}
            v_mul_u32_u24 v4, 0x0202, v4
            v_lshlrev_b32 v4, 16, v4
            v_add_u32 v4, 0x05040c0c, v4
            s_waitcnt lgkmcnt(0)""")
            for i in range(8): a(f"v_perm_b32 v{108+i}, v{108+i}, v{108+i}, v4")
            for i in range(8): a(f"v_fma_f32 v{108+i}, v{108+i}, {CEXP}, -v116")
            for i in range(8): a(f"v_exp_f32 v{108+i}, v{108+i}")
            for i in range(8): a(f"v_mul_f32 v{108+i}, v{108+i}, v117")
            for k in range(4): a(f"v_cvt_pk_bf16_f32 v{96+k}, v{108+2*k}, v{109+2*k}")
        def amake(r):
            for jj in range(4):
                n = (4*(jj - r)) % 16
                for k in range(4):
                    a(f"v_mov_b32_dpp v{16+4*jj+k}, v{96+k} " + (f"row_ror:{n}" if n else "quad_perm:[0,1,2,3]") + f" row_mask:0xf bank_mask:{1<<jj:#x}")
        def pv(r, js):
            R = vreg(r)
            for j in js:
                T = 108 + 4*(j & 3)
                for i2 in range(4): a(f"v_perm_b32 v{T+i2}, v{R+8*i2+4+(j>>1)}, v{R+8*i2+(j>>1)}, {SELHI if j & 1 else SELLO}")
                D = 100 + 4*(j >> 2)
                a(f"v_mfma_f32_16x16x32_bf16 {vr(D)}, {vr(16+4*(j&3))}, {vr(T)}, {vr(D) if (r or j & 3) else 0}")
        for i in range(8):
            vload(0, i)
            if i == 0: kmm(6)
            if i == 1: kfin(6)
            if i == d - 1: kmm(7); kfin(7); publish()
        for i in range(8): vload(1, i)
        softmax(); amake(0); a.vm_wait("v0_7"); pv(0, range(8))
        for i in range(8):
            vload(2, i)
            if i == 0: amake(1)
            if i >= d - 1 and i - (d - 1) < 4:
                if i == d - 1: a.vm_wait("v1_7")
                k = i - (d - 1); pv(1, [2*k, 2*k+1])
        for i in range(8):
            vload(3, i)
            if i == 0: amake(2)
            if i >= d - 1 and i - (d - 1) < 4:
                if i == d - 1: a.vm_wait("v2_7")
                k = i - (d - 1); pv(2, [2*k, 2*k+1])
        assert d - 1 + 3 <= 7
        a.vm = vm0
    a("s_cmp_eq_u32 s6, 3\ns_cbranch_scc1 L_v3")
    vphase(dv); a("s_branch L_vlast\nL_v3:"); vphase(dv3)
    a("L_vlast:\ns_nop 1")
    for jj in range(4):
        n = (4*(jj - 3)) % 16
        for k in range(4):
            a(f"v_mov_b32_dpp v{16+4*jj+k}, v{96+k} " + (f"row_ror:{n}" if n else "quad_perm:[0,1,2,3]") + f" row_mask:0xf bank_mask:{1<<jj:#x}")
    a(f"""v_and_b32 v3, 7, v0
    v_lshlrev_b32 v3, 5, v3
    v_lshrrev_b32 v4, 4, v0
    v_lshl_add_u32 v3, v4, 2, v3
    v_lshlrev_b32 v3, 1, v3
    s_mov_b32 s30, 0xff00ff00
    s_mov_b32 s31, 0xff00ff00""")
    a("L_st_tail:")
    for i2 in range(4):
        a(f"s_waitcnt vmcnt({6-2*i2})")
        for j in range(8): a(f"v_perm_b32 v{64+4*j+i2}, v{32+8*i2+4+(j>>1)}, v{32+8*i2+(j>>1)}, {SELHI if j & 1 else SELLO}")
    for j in (0, 4, 1, 5, 2, 6, 3, 7):
        D = 100 + 4*(j >> 2)
        a(f"v_mfma_f32_16x16x32_bf16 {vr(D)}, {vr(16+4*(j&3))}, {vr(64+4*j)}, {vr(D)}")
    for jh in range(2):
        for h in range(2): a(f"v_cndmask_b32 v{108+2*jh+h}, v{100+4*jh+h}, v{100+4*jh+2+h}, s[30:31]")
    for jh in range(2):
        for h in range(2): a(f"v_cvt_f64_f32 v[{112+4*jh+2*h}:{113+4*jh+2*h}], v{108+2*jh+h}\nds_add_f64 v3, v[{112+4*jh+2*h}:{113+4*jh+2*h}] offset:{OACC+h*512+jh*32}")
    a("s_waitcnt lgkmcnt(0)")
    stamp(5)
    guard("s_barrier")
    Ls = a.label("up")
    if dry: a(f"s_cbranch_execz {Ls}")
    a(f"s_cmp_eq_u32 s28, 2\ns_cbranch_scc1 L_st_end\ns_cmp_eq_u32 s3, 7\ns_cbranch_scc1 L_st_end\n{Ls}:")
    a(f"s_lshl_b32 s33, s3, 13\ns_add_u32 s33, s33, {GU+7*8192}\ns_mov_b32 s32, {GUACC+512}")
    g_prep()
    if dry: a("s_cbranch_execz L_svc_tail")
    a("s_setprio 3")
    a("s_branch L_gstage\nL_st_end:"); finish()

    a(f"""L_comm:
    v_mov_b32 v4, 0
    v_mov_b32 v5, 0
    v_mov_b32 v6, 0
    v_mov_b32 v7, 0
    v_lshlrev_b32 v1, 4, v0
    ds_write_b128 v1, v[4:7]
    ds_write_b128 v1, v[4:7] offset:1024
    ds_write_b128 v1, v[4:7] offset:2048
    s_setprio 3
    s_waitcnt lgkmcnt(0)
    s_barrier""")
    tag_load(); ws_srd()
    a(f"""v_mov_b32 v4, -1
    v_mov_b32 v5, -1
    v_mov_b32 v6, -1
    v_mov_b32 v7, -1
    s_lshl_b32 s34, s5, 3
    s_add_u32 s34, s34, s4
    s_lshl_b32 s30, s34, 13
    s_lshl_b32 s31, s6, 11
    s_add_u32 s30, s30, s31
    s_add_u32 s30, s30, {SC_OFF}
    buffer_store_dwordx4 v[4:7], v1, {WS}, s30 offen sc1
    buffer_store_dwordx4 v[4:7], v1, {WS}, s30 offen offset:1024 sc1
    s_lshl_b32 s30, s5, 5
    s_lshl_b32 s31, s4, 2
    s_add_u32 s30, s30, s31
    s_add_u32 s30, s30, s6
    s_mul_i32 s30, s30, 1792
    s_add_u32 s30, s30, {PA_OFF}
    s_mul_i32 s31, s5, 28
    s_add_u32 s31, s31, s7
    s_mul_i32 s31, s31, 1792
    s_add_u32 s31, s31, {PD_OFF}
    s_cmp_eq_u32 s28, 2
    s_cselect_b32 s31, s30, s31
    buffer_store_dwordx4 v[4:7], v1, {WS}, s30 offen sc1
    buffer_store_dwordx4 v[4:7], v1, {WS}, s31 offen sc1
    s_mov_b32 exec_hi, 0xffff
    buffer_store_dwordx4 v[4:7], v1, {WS}, s30 offen offset:1024 sc1
    buffer_store_dwordx4 v[4:7], v1, {WS}, s31 offen offset:1024 sc1
    s_lshl_b32 s30, s34, 9
    s_lshl_b32 s31, s6, 7
    s_add_u32 s30, s30, s31
    s_add_u32 s30, s30, {ST_OFF}
    s_mov_b64 exec, 0xff
    buffer_store_dwordx4 v[4:7], v1, {WS}, s30 offen sc1
    s_mov_b64 exec, 1
    s_lshl_b32 s30, s5, 5
    s_lshl_b32 s31, s4, 2
    s_add_u32 s30, s30, s31
    s_add_u32 s30, s30, s6
    s_lshl_b32 s30, s30, 2
    s_add_u32 s30, s30, {CERT_OFF}""")
    tag_wait()
    a("s_cmp_eq_u32 s28, 0\ns_cbranch_scc1 L_c_cert")
    lds_spin(CRIT, 7, st="s31")
    a(f"""L_c_cert:
    v_mov_b32 v3, {TAG}
    s_waitcnt vmcnt(0)
    buffer_store_dword v3, v2, {WS}, s30 offen sc1
    s_mov_b64 exec, -1""")
    stamp(1)
    a(f"s_lshl_b32 s30, s5, 13\ns_lshl_b32 s31, s4, 10\ns_add_u32 s30, s30, s31\ns_add_u32 s30, s30, {Q_OFF}\ns_add_u32 s32, s30, {DUAL}")
    poll_dual([f"buffer_load_dwordx4 v[12:15], v1, {WS}, s30 offen sc1", f"buffer_load_dwordx4 v[16:19], v1, {WS}, s32 offen sc1"], [(12+k, 16+k) for k in range(4)], cnt="s33")
    a(f"ds_write_b128 v1, v[12:15] offset:{QL}\nv_mov_b32 v3, 1\ns_waitcnt lgkmcnt(0)\nds_write_b32 v2, v3 offset:{FQ}")
    stamp(2)
    a("s_cmp_eq_u32 s28, 2\ns_cbranch_scc1 L_c_nomodg")
    srd(96, 36, 7168)
    a(f"""s_mul_i32 s30, s5, 896
    s_mov_b32 exec_hi, 0xffffff
    buffer_load_dwordx4 v[28:31], v1, s[96:99], s30 offen
    s_mov_b32 exec_hi, -1
    s_mul_i32 s30, s5, 5376
    s_add_u32 s30, s30, {MOD_OFF+1792}
    s_add_u32 s32, s30, {DUAL}
    v_and_b32 v3, 31, v0
    v_lshlrev_b32 v8, 4, v3""")
    poll_dual([f"buffer_load_dwordx4 {vr(12+4*k)}, {'v1' if k < 3 else 'v8'}, {WS}, s30 offen offset:{k*1024} sc1" for k in range(4)] +
              [f"buffer_load_dwordx4 {vr(32+4*k)}, {'v1' if k < 3 else 'v8'}, {WS}, s32 offen offset:{k*1024} sc1" for k in range(4)],
              [(12+k, 32+k) for k in range(16)], cnt="s33")
    for k in range(4): a(f"ds_write_b128 {'v1' if k < 3 else 'v8'}, {vr(12+4*k)} offset:{MODL+k*1024}")
    a(f"s_mov_b32 exec_hi, 0xffffff\nds_write_b128 v1, v[28:31] offset:{XL}\ns_mov_b32 exec_hi, -1\nL_c_nomodg:")
    stamp(6)
    a(f"""v_and_b32 v3, 7, v0
    v_lshlrev_b32 v3, 4, v3
    s_lshl_b32 s30, s5, 7
    v_add_u32 v3, s30, v3
    s_cmp_eq_u32 s2, 0
    s_cselect_b64 vcc, -1, 0
    v_cndmask_b32 v10, v3, v1, vcc
    v_mov_b32 v16, 0
    s_mov_b32 s30, {CERT_OFF}""")
    L = a.label("cert"); D = a.label("certd")
    a(f"""s_mov_b32 s33, 0
    {L}:
    buffer_load_dwordx4 v[12:15], v10, {WS}, s30 offen sc1
    s_waitcnt vmcnt(0)
    v_xor_b32 v12, {TAG}, v12
    v_xor_b32 v13, {TAG}, v13
    v_xor_b32 v14, {TAG}, v14
    v_xor_b32 v15, {TAG}, v15
    v_or3_b32 v12, v12, v13, v14
    v_or_b32 v12, v12, v15
    v_cmp_ne_u32 vcc, 0, v12
    s_cbranch_vccz {D}
    s_add_u32 s33, s33, 1
    s_cmp_lt_u32 s33, {SPIN_MAX}
    s_cbranch_scc1 {L}
    {D}:
    s_cmp_lg_u32 s2, 0
    s_cbranch_scc1 L_c_notag
    v_mov_b32 v3, {TAG}
    s_mov_b32 s30, {XN_OFF}
    s_mov_b64 exec, 1
    buffer_store_dword v3, v2, {WS}, s30 offen sc1
    s_mov_b64 exec, -1
    L_c_notag:""")
    stamp(3)
    if diag: a("s_waitcnt lgkmcnt(0)\ns_mov_b32 s83, s92")
    if dry: a("s_mov_b64 exec, 0\ns_branch L_st_tail\nL_dry2:\ns_branch L_final\nL_dry3:\ns_nop 7\ns_mov_b64 exec, -1")
    lds_spin(KDONE, 8)
    a(f"""s_lshl_b32 s34, s5, 3
    s_add_u32 s34, s34, s4
    s_lshl_b32 s30, s34, 13
    s_add_u32 s30, s30, {SC_OFF}
    s_add_u32 s32, s30, 4096
    s_lshl_b32 s35, s34, 9
    s_add_u32 s35, s35, {ST_OFF}
    v_and_b32 v3, 31, v0
    v_lshlrev_b32 v8, 4, v3""")
    poll([f"buffer_load_dwordx4 v[12:15], v8, {WS}, s35 offen sc1"] +
         [f"buffer_load_dwordx4 {vr(32+4*k)}, v1, {WS}, {'s30' if k < 4 else 's32'} offen offset:{(k&3)*1024} sc1" for k in range(8)],
         list(range(12, 16)) + list(range(32, 64)), cnt="s33")
    stamp(4)
    for k in range(8): a(f"ds_write_b128 v1, {vr(32+4*k)} offset:{SCL+k*1024}")
    a("v_mov_b32 v16, v12\nv_mov_b32 v18, v14")
    for n in (1, 2, 4, 8):
        for v in ("v16", "v18"): a(f"v_max_f32_dpp {v}, {v}, {v} row_ror:{n} row_mask:0xf bank_mask:0xf")
    for v, t in (("v16", "v3"), ("v18", "v4")): a(f"v_mov_b32 {t}, {v}\nv_permlane16_swap_b32 {t}, {v}\nv_max_f32 {v}, {v}, {t}")
    a(f"""v_sub_f32 v12, v12, v16
    v_sub_f32 v14, v14, v18
    v_mul_f32 v12, {CEXP}, v12
    v_mul_f32 v14, {CEXP}, v14
    v_exp_f32 v12, v12
    v_exp_f32 v14, v14
    v_mul_f32 v17, v12, v13
    v_mul_f32 v19, v14, v15""")
    for n in (1, 2, 4, 8):
        for v in ("v17", "v19"): a(f"v_add_f32_dpp {v}, {v}, {v} row_ror:{n} row_mask:0xf bank_mask:0xf")
    for v, t in (("v17", "v3"), ("v19", "v4")): a(f"v_mov_b32 {t}, {v}\nv_permlane16_swap_b32 {t}, {v}\nv_add_f32 {v}, {v}, {t}")
    a(f"""v_rcp_f32 v17, v17
    v_rcp_f32 v19, v19
    v_mul_f32 v16, {CEXP}, v16
    v_mul_f32 v18, {CEXP}, v18
    v_mov_b32 v3, 1
    ds_write_b128 v2, v[16:19] offset:{MS}
    s_waitcnt lgkmcnt(0)
    ds_write_b32 v2, v3 offset:{FP}
    s_mul_i32 s30, s5, {28*1792}
    s_lshl_b32 s31, s7, 6
    s_add_u32 s30, s30, s31
    s_add_u32 s68, s30, {PD_OFF}
    s_add_u32 s69, s68, {2*1792}
    s_add_u32 s70, s68, {4*1792}
    s_add_u32 s71, s68, {6*1792}
    v_lshrrev_b32 v3, 4, v0
    v_mul_u32_u24 v3, {7*1792}, v3
    v_and_b32 v4, 15, v0
    v_lshl_add_u32 v8, v4, 2, v3
    s_lshl_b32 s30, s7, 4
    v_add_u32 v9, s30, v4
    v_lshlrev_b32 v10, 2, v9
    v_lshlrev_b32 v9, 1, v9
    s_mul_i32 s72, s5, 896""")
    srd(96, 58, 7168)
    a("s_waitcnt lgkmcnt(0)\ns_barrier\ns_cmp_eq_u32 s28, 2\ns_cbranch_scc1 L_st_end\ns_barrier")
    a(f"ds_read_b32 v20, v10 offset:{X1L}\nds_read_u16 v21, v9 offset:{MODL+2688}\ns_waitcnt lgkmcnt(0)\nv_lshlrev_b32 v21, 16, v21\ns_barrier")
    stamp(5)
    a("L_final:\ns_mov_b32 s33, 0")
    L = a.label("pd"); D = a.label("pdd")
    a(f"{L}:")
    guard("\n".join(f"buffer_load_dword v{12+k}, v8, {WS}, s{68+(k>>1)} offen offset:{(k&1)*1792} sc1" for k in range(7)))
    a("s_waitcnt vmcnt(0)")
    check(range(12, 19), "v3")
    a(f"s_cbranch_vccz {D}\ns_add_u32 s33, s33, 1\ns_cmp_lt_u32 s33, {SPIN_MAX}\ns_cbranch_scc1 {L}\n{D}:")
    stamp(6)
    a("v_add_f32 v12, v12, v13\nv_add_f32 v14, v14, v15\nv_add_f32 v16, v16, v17\nv_add_f32 v12, v12, v18\nv_add_f32 v14, v14, v16\nv_add_f32 v12, v12, v14")
    xrow_reduce("v_add_f32", "v12", "v3")
    round1("v12"); a("v_mul_f32 v12, v12, v21"); round1("v12"); a("v_add_f32 v12, v12, v20\nv_cvt_pk_bf16_f32 v12, v12, v12")
    guard("s_mov_b64 exec, 0xffff\nbuffer_store_short v12, v9, s[96:99], s72 offen")
    if dry: a("s_cbranch_execz L_dry3")
    if diag:
        a("s_mov_b64 exec, -1")
        stamp(7)
        a(f"""L_finish:
        s_waitcnt lgkmcnt(0)
        s_mov_b64 exec, -1
        v_mov_b32 v4, 0""")
        for i in range(8): a(f"v_writelane_b32 v4, s{80+2*i}, {i}")
        a("s_cmp_eq_u32 s81, 15\ns_cselect_b32 s30, s83, s80\nv_writelane_b32 v4, s30, 0")
        a(f"""s_getreg_b32 s30, hwreg(HW_REG_HW_ID)
        v_lshrrev_b32 v3, 6, v0
        s_lshl_b32 s30, s2, 9
        v_lshlrev_b32 v3, 2, v0
        s_lshl_b32 s31, s81, 5
        s_add_u32 s30, s30, s31
        s_add_u32 s30, s30, {TS_OFF}
        s_mov_b64 exec, 0xff
        buffer_store_dword v4, v3, {WS}, s30 offen""")
    a("L_end:\ns_endpgm")
    body = a.text()
    if diag: body = body.replace("    s_and_b32 s4, s2, 7\n", "    s_waitcnt lgkmcnt(0)\n    s_mov_b32 s81, s3\n    s_and_b32 s4, s2, 7\n", 1)
    hdr = open("adaLN_cond__sliding_block_cached__glu_gated_glu__decode.s.ref").read().split("; Override launch")[0]
    return (hdr + f"; @launch grid=(256,1,1) block=(1024,1,1) lds={LDS_BYTES}\n.amdgcn_target \"amdgcn-amd-amdhsa--gfx950\"\n.text\n.globl {NAME}\n.p2align 8\n.type {NAME},@function\n{NAME}:\n"
            + body + f""".section .rodata,"a"
.p2align 6
.amdhsa_kernel {NAME}
  .amdhsa_next_free_vgpr 128
  .amdhsa_next_free_sgpr 102
  .amdhsa_accum_offset 128
  .amdhsa_group_segment_fixed_size 0
  .amdhsa_kernarg_size 112
  .amdhsa_user_sgpr_count 2
  .amdhsa_user_sgpr_kernarg_segment_ptr 1
  .amdhsa_system_sgpr_workgroup_id_x 1
  .amdhsa_float_denorm_mode_32 3
.end_amdhsa_kernel
""")

if __name__ == "__main__":
    kw = eval("dict(%s)" % (sys.argv[2] if len(sys.argv) > 2 else ""))
    open(sys.argv[1], "w").write(gen(**kw))
```

```python
import struct, math, sys
from asm2 import Asm
NAME = "adaLN_cond__sliding_block_cached__glu_gated_glu__decode_kernel"
def f32(x): return "0x%08x" % struct.unpack("<I", struct.pack("<f", x))[0]

MOD_OFF, Q_OFF, SC_OFF, ST_OFF, PA_OFF, PD_OFF, TS_OFF = 0x0, 0x10000, 0x20000, 0xA0000, 0xB0000, 0x120000, 0x200000
DUAL = 0x190000
CERT_OFF, XN_OFF = 0xA8000, 0xA9000
TAG = 's78'
FQ, FP, CRIT, KDONE, RC0, RC1, RC2, FC, MS, F0, XC = 0, 4, 8, 12, 16, 20, 24, 28, 32, 48, 52
OACC, GUACC, STL, X1L, XST, QL, MODL, XL, SCL, RED, GU = 0x100, 0x500, 0x80, 0x900, 0x500, 0x1000, 0x1400, 0x2200, 0x2800, 0x4800, 0x8000
LDS_BYTES = 0x24000
W0, W1, W2 = 32, 64, 96
SPIN_MAX = 1 << 20

def gen(dk=3, dv=3, dv3=4, dw=2, diag=False, dry=True, pol="nt", dbg=False):
    a = Asm()
    SELLO, SELHI, HIM, CEXP = "s64", "s65", "s66", "s67"
    def vr(b, n=4): return f"v[{b}:{b+n-1}]"
    def stamp(i):
        if diag: a(f"s_memrealtime s[{80+2*i}:{81+2*i}]")
    def srd(d, p, size):
        a(f"s_mov_b32 s{d}, s{p}\ns_mov_b32 s{d+1}, s{p+1}\ns_mov_b32 s{d+2}, {size}\ns_mov_b32 s{d+3}, 0x20000")
    def lds_spin(off, target, vt="v3", st="s30", nap=True):
        L = a.label("spin"); D = a.label("spind")
        a(f"""{L}:
        ds_read_b32 {vt}, v2 offset:{off}
        s_waitcnt lgkmcnt(0)
        v_readfirstlane_b32 {st}, {vt}
        s_cmp_ge_u32 {st}, {target}
        s_cbranch_scc1 {D}
        {'s_sleep 1' if nap else ''}
        s_branch {L}
        {D}:""")
    def lds_inc(off, vt="v3"):
        a(f"v_mov_b32 {vt}, 1\ns_mov_b64 exec, 1\nds_add_u32 v2, {vt} offset:{off}\ns_mov_b64 exec, -1")
    def unpack2(lo, hi, pk):
        a(f"v_lshlrev_b32 {lo}, 16, {pk}\nv_and_b32 {hi}, {HIM}, {pk}") if lo != pk else a(f"v_and_b32 {hi}, {HIM}, {pk}\nv_lshlrev_b32 {lo}, 16, {pk}")
    def round2(x, y, t):
        a(f"v_cvt_pk_bf16_f32 {t}, {x}, {y}"); unpack2(x, y, t)
    def round1(x):
        a(f"v_cvt_pk_bf16_f32 {x}, {x}, {x}\nv_lshlrev_b32 {x}, 16, {x}")
    def transpose_inplace(Wb, t0="v4", t1="v5"):
        P = lambda i, d: (f"v{Wb+8*i+d}", f"v{Wb+8*i+4+d}")
        for i in range(4):
            e, o = P(i, i)
            a(f"v_perm_b32 {t0}, {o}, {e}, {SELLO}\nv_perm_b32 {o}, {o}, {e}, {SELHI}\nv_mov_b32 {e}, {t0}")
            for d in range(i+1, 4):
                e, o = P(i, d); e2, o2 = P(d, i)
                a(f"""v_perm_b32 {t0}, {o}, {e}, {SELLO}
                v_perm_b32 {t1}, {o}, {e}, {SELHI}
                v_perm_b32 {e}, {o2}, {e2}, {SELLO}
                v_perm_b32 {o}, {o2}, {e2}, {SELHI}
                v_mov_b32 {e2}, {t0}
                v_mov_b32 {o2}, {t1}""")
    def block_voff(v, stride):
        a(f"v_lshrrev_b32 v3, 3, v0\nv_mul_u32_u24 v3, {8*stride}, v3\nv_and_b32 {v}, 7, v0\nv_lshl_add_u32 {v}, {v}, 4, v3")
    def load_block(dst, voff, sr, soff, stride, pace=None, tag=None, fill=None):
        for i in range(8):
            if pace: a.vm_pace(pace)
            a.vmem(f"buffer_load_dwordx4 {vr(dst+4*i)}, {voff}, s[{sr}:{sr+3}], {soff} offen {pol}", tag)
            if i < 7: a(f"s_add_u32 {soff}, {soff}, {stride}")
            if fill and i in fill: fill[i]()
    def dma_block(ldsbase_s, voff, sr, soff, stride, pace=None, tag=None, fill=None):
        for i in range(8):
            a(f"s_add_u32 m0, {ldsbase_s}, {i*1024}")
            if pace: a.vm_pace(pace)
            a.vmem(f"buffer_load_dwordx4 {voff}, s[{sr}:{sr+3}], {soff} offen {pol} lds", tag)
            if i < 7: a(f"s_add_u32 {soff}, {soff}, {stride}")
            if fill and i in fill: fill[i]()
    def poll(loads, regs, vt="v3", cnt="s31"):
        L = a.label("poll"); D = a.label("polld")
        a(f"s_mov_b32 {cnt}, 0\n{L}:")
        for l in loads: a(l)
        a("s_waitcnt vmcnt(0)")
        check(regs, vt)
        a(f"""s_cbranch_vccz {D}
        s_add_u32 {cnt}, {cnt}, 1
        s_cmp_lt_u32 {cnt}, {SPIN_MAX}
        s_cbranch_scc1 {L}
        {D}:""")
        a.vm_reset()
    def poll_dual(loads, pairs, cnt="s31"):
        L = a.label("pollx"); D = a.label("pollxd")
        a(f"s_mov_b32 {cnt}, 0\n{L}:")
        for l in loads: a(l)
        a("s_waitcnt vmcnt(0)")
        for k, (x, y) in enumerate(pairs):
            a(f"v_xor_b32 v{y}, v{x}, v{y}\nv_xor_b32 v{y}, {TAG}, v{y}")
            if k: a(f"v_or_b32 v{pairs[0][1]}, v{pairs[0][1]}, v{y}")
        a(f"""v_cmp_ne_u32 vcc, 0, v{pairs[0][1]}
        s_cbranch_vccz {D}
        s_add_u32 {cnt}, {cnt}, 1
        s_cmp_lt_u32 {cnt}, {SPIN_MAX}
        s_cbranch_scc1 {L}
        {D}:""")
        a.vm_reset()
    def tag_load():
        a(f"s_load_dword {TAG}, s[62:63], {XN_OFF:#x}")
    def tag_wait():
        a(f"s_waitcnt lgkmcnt(0)\ns_add_u32 {TAG}, {TAG}, 0x9e3779b9")
    def check(regs, vt):
        r = list(regs)
        if len(r) == 1: a(f"v_cmp_eq_u32 vcc, -1, v{r[0]}"); return
        if len(r) == 2: a(f"v_max_u32 {vt}, v{r[0]}, v{r[1]}"); r = []
        else: a(f"v_max3_u32 {vt}, v{r[0]}, v{r[1]}, v{r[2]}"); r = r[3:]
        while r:
            if len(r) >= 2: a(f"v_max3_u32 {vt}, {vt}, v{r[0]}, v{r[1]}"); r = r[2:]
            else: a(f"v_max_u32 {vt}, {vt}, v{r[0]}"); r = []
        a(f"v_cmp_eq_u32 vcc, -1, {vt}")
    def cnt_poll(off, targets):
        L = a.label("cp"); D = a.label("cpd"); n = len(targets)
        a(f"s_mov_b32 s31, 0\n{L}:")
        if n == 1: a(f"global_load_dword v4, {off}, s[60:61] sc1")
        else: a(f"global_load_dwordx2 v[4:5], {off}, s[60:61] sc1")
        a("s_waitcnt vmcnt(0)")
        a(f"v_cmp_gt_u32 vcc, {targets[0]}, v4")
        if n == 2: a(f"v_cmp_gt_u32 s[32:33], {targets[1]}, v5\ns_or_b64 vcc, vcc, s[32:33]")
        a(f"""s_cbranch_vccz {D}
        s_add_u32 s31, s31, 1
        s_cmp_lt_u32 s31, {SPIN_MAX}
        s_cbranch_scc1 {L}
        {D}:""")
        a.vm_reset()
    def row_reduce(op, v, steps=(1, 2, 4, 8)):
        for n in steps: a(f"{op}_dpp {v}, {v}, {v} row_ror:{n} row_mask:0xf bank_mask:0xf")
    def xrow_reduce(op, v, t):
        a(f"v_mov_b32 {t}, {v}\nv_permlane16_swap_b32 {t}, {v}\n{op} {v}, {v}, {t}\nv_mov_b32 {t}, {v}\nv_permlane32_swap_b32 {t}, {v}\n{op} {v}, {v}, {t}")
    def guard(text):
        if not dry: a(text); return
        L = a.label("g"); a(f"s_cbranch_execz {L}"); a(text); a(f"{L}:")
    def setexec(val):
        lo, hi = val & 0xffffffff, val >> 32
        return f"s_mov_b32 exec_lo, {lo:#x}\ns_mov_b32 exec_hi, {hi:#x}"
    def finish(): a("s_branch L_finish" if diag else "s_endpgm")

    a(f"""
    s_cmp_ge_u32 s2, 256
    s_cbranch_scc1 L_end
    s_load_dwordx16 s[36:51], s[0:1], 0
    s_load_dwordx8 s[52:59], s[0:1], 64
    s_load_dwordx4 s[60:63], s[0:1], 96
    """)
    if diag:
        for i in range(1, 8): a(f"s_mov_b32 s{80+2*i}, 0")
    stamp(0)
    a(f"""
    v_lshrrev_b32 v1, 6, v0
    v_and_b32 v0, 63, v0
    v_mov_b32 v2, 0
    v_readfirstlane_b32 s3, v1
    s_and_b32 s4, s2, 7
    s_bfe_u32 s5, s2, 0x30003
    s_lshr_b32 s6, s2, 6
    s_mov_b32 s28, 0
    s_mov_b32 s29, 0
    s_lshl_b32 s7, s4, 2
    s_add_u32 s7, s7, s6
    s_sub_u32 s7, s7, 4
    s_cmp_ge_u32 s4, 2
    s_cbranch_scc1 L_typed
    s_lshl_b32 s7, s4, 1
    s_add_u32 s7, s7, s6
    s_cmp_eq_u32 s6, 1
    s_cbranch_scc1 L_typed
    s_cmp_eq_u32 s6, 0
    s_cbranch_scc0 L_typeP
    s_mov_b32 s28, 1
    s_lshl_b32 s29, s5, 1
    s_add_u32 s29, s29, s4
    s_branch L_typed
    L_typeP:
    s_mov_b32 s28, 2
    s_sub_u32 s29, s7, 2
    s_lshl_b32 s29, s29, 3
    s_add_u32 s29, s29, s5
    L_typed:
    s_mov_b32 {SELLO}, 0x05040100
    s_mov_b32 {SELHI}, 0x07060302
    s_mov_b32 {HIM}, 0xffff0000
    s_mov_b32 {CEXP}, {f32(math.log2(math.e)/16)}
    s_cmp_lt_u32 s3, 8
    s_cbranch_scc1 L_stream
    s_cmp_eq_u32 s3, 15
    s_cbranch_scc1 L_comm
    """)
    WS = "s[24:27]"
    def ws_srd(): srd(24, 62, hex(0x300000 if diag else 0x200000))

    a("s_sub_u32 s3, s3, 8\ns_barrier\ns_waitcnt lgkmcnt(0)")
    ws_srd()
    a(f"""
    v_lshrrev_b32 v3, 4, v0
    v_lshlrev_b32 v3, 1, v3
    v_and_b32 v4, 1, v0
    v_add_u32 v3, v3, v4
    v_lshlrev_b32 v6, 4, v3
    s_lshl_b32 s30, s3, 7
    v_add_u32 v6, s30, v6
    v_bfe_u32 v7, v0, 1, 3
    v_lshlrev_b32 v31, 4, v0
    s_cmp_eq_u32 s28, 0
    s_cbranch_scc1 L_svc_w
    """)
    a('s_setprio 2'); tag_load(); srd(68, 56, 448*5376); srd(8, 54, 7168)
    a("s_cmp_eq_u32 s28, 2\ns_cbranch_scc1 L_svc_P")

    def gemv8_finish(Wb, red, cnt):
        for j in range(8): a(f"v_mfma_f32_16x16x32_bf16 {vr(Wb+4*j)}, v[12:15], {vr(Wb+4*j)}, 0")
        for j in range(8):
            D = Wb + 4*j
            a(f"v_add_f32_dpp v{16+j}, v{D+1}, v{D} row_ror:8 row_mask:0xf bank_mask:0x3")
            a(f"v_add_f32_dpp v{16+j}, v{D+2}, v{D+3} row_ror:8 row_mask:0xf bank_mask:0xc")
        a(f"""s_lshl_b32 s30, s3, 11
        v_add_u32 v3, s30, v31
        ds_write_b128 v3, v[16:19] offset:{red}
        ds_write_b128 v3, v[20:23] offset:{red+1024}
        s_waitcnt lgkmcnt(0)""")
        lds_inc(cnt)
    def reduce_publish(red, cnt, rowstride, soff_code):
        lds_spin(cnt, 7, nap=False); stamp(7)
        for rnd, ws_ in enumerate([range(0, 4), range(4, 7)]):
            for k, w in enumerate(ws_):
                a(f"ds_read_b128 {vr(W2+8*k)}, v31 offset:{red+w*2048}\nds_read_b128 {vr(W2+8*k+4)}, v31 offset:{red+w*2048+1024}")
            a("s_waitcnt lgkmcnt(0)")
            for k, w in enumerate(ws_):
                for j in range(8):
                    if w == 0: a(f"v_mov_b32 v{16+j}, v{W2+j}")
                    else: a(f"v_add_f32 v{16+j}, v{16+j}, v{W2+8*k+j}")
        for d in range(4): a(f"v_cvt_pk_bf16_f32 v{24+d}, v{16+2*d}, v{17+2*d}")
        for d in range(4): a(f"v_xor_b32 v{16+d}, {TAG}, v{24+d}")
        a(f"v_lshrrev_b32 v3, 3, v0\nv_mul_u32_u24 v3, {rowstride}, v3\nv_and_b32 v4, 7, v0\nv_lshl_add_u32 v3, v4, 4, v3")
        a(soff_code)
        a.vmem(f"buffer_store_dwordx4 v[24:27], v3, {WS}, s33 offen sc1")
        a(f"s_add_u32 s33, s33, {DUAL}")
        a.vmem(f"buffer_store_dwordx4 v[16:19], v3, {WS}, s33 offen sc1")
    def mod_issue(blk_code, creg=8):
        block_voff("v1", 5376)
        a(f"s_mul_i32 s34, s3, {64*5376}")
        a(blk_code)
        a("s_lshl_b32 s30, s35, 7\ns_add_u32 s34, s34, s30")
        a("v_mul_u32_u24 v3, 896, v7\nv_add_u32 v3, v3, v6")
        a.vmem(f"buffer_load_dwordx4 {vr(creg)}, v3, s[8:11], 0 offen", "c")
        load_block(W2, "v1", 68, "s34", 5376, tag="wm")
    def mod_compute(red, cnt, creg=8, skip=None):
        a.vm_wait("c")
        for d in range(4): unpack2(f"v{16+2*d}", f"v{17+2*d}", f"v{creg+d}")
        T = lambda i: 24+i if i < 4 else creg+i-4
        for i in range(8): a(f"v_mul_f32 v{T(i)}, {f32(-math.log2(math.e))}, v{16+i}")
        for i in range(8): a(f"v_exp_f32 v{T(i)}, v{T(i)}")
        for i in range(8): a(f"v_add_f32 v{T(i)}, 1.0, v{T(i)}")
        for i in range(8): a(f"v_rcp_f32 v{T(i)}, v{T(i)}")
        for i in range(8): a(f"v_mul_f32 v{16+i}, v{16+i}, v{T(i)}")
        for d in range(4): a(f"v_cvt_pk_bf16_f32 v{12+d}, v{16+2*d}, v{17+2*d}")
        a.vm_wait("wm")
        transpose_inplace(W2)
        gemv8_finish(W2, red, cnt)
        L = a.label("nored")
        a(f"s_cmp_lg_u32 s3, 0\ns_cbranch_scc1 {L}")
        if skip: a(f"{skip}\ns_cbranch_scc1 {L}")
        reduce_publish(red, cnt, 5376, f"s_lshl_b32 s33, s35, 7\ns_add_u32 s33, s33, {MOD_OFF}")
        a(f"{L}:")

    a.vm_reset()
    mod_issue("s_mov_b32 s35, s29")
    tag_wait(); lds_inc(CRIT)
    mod_compute(RED, RC0)
    stamp(1)
    a("s_branch L_svc_w")

    a("L_svc_P:")
    a.vm_reset()
    srd(72, 42, 448*8192); srd(96, 36, 7168)
    a("v_mul_u32_u24 v3, 896, v7\nv_add_u32 v3, v3, v6")
    a.vmem("buffer_load_dwordx4 v[8:11], v3, s[96:99], 0 offen", "x")
    block_voff("v1", 8192)
    a(f"s_mul_i32 s34, s3, {64*8192}\ns_lshl_b32 s30, s29, 8\ns_add_u32 s34, s34, s30\ns_add_u32 s35, s34, 128")
    load_block(W0, "v1", 72, "s34", 8192, tag="q0")
    load_block(W1, "v1", 72, "s35", 8192, tag="q1")
    mod_issue("s_add_u32 s35, s29, 16\ns_min_u32 s35, s35, 41", creg=12)
    tag_wait()
    a.vm_wait("x")
    def red8(v):
        a(f"v_add_f32_dpp {v}, {v}, {v} quad_perm:[1,0,3,2] row_mask:0xf bank_mask:0xf")
        xrow_reduce("v_add_f32", v, "v3")
    for d in range(4): unpack2(f"v{16+2*d}", f"v{17+2*d}", f"v{8+d}")
    a("v_add_f32 v24, v16, v17")
    for i in range(2, 8): a(f"v_add_f32 v24, v24, v{16+i}")
    red8("v24")
    a(f"v_mul_f32 v24, {f32(1/64)}, v24\nv_mov_b32 v25, 0")
    for i in range(8): a(f"v_sub_f32 v3, v{16+i}, v24\nv_fmac_f32 v25, v3, v3")
    red8("v25")
    a(f"""s_lshl_b32 s30, s3, 3
    v_lshlrev_b32 v26, 6, v7
    v_add_u32 v3, s30, v26
    ds_write_b64 v3, v[24:25] offset:{XST}
    v_lshrrev_b32 v3, 4, v0
    v_and_b32 v4, 1, v0
    v_lshl_add_u32 v27, v3, 1, v4
    v_lshl_add_u32 v26, v27, 3, v26
    v_cmp_gt_u32 vcc, 7, v27
    v_mov_b32 v4, {f32(64.0)}
    v_cndmask_b32 v27, 0, v4, vcc
    s_waitcnt lgkmcnt(0)""")
    lds_inc(XC); lds_spin(XC, 7, nap=False)
    a(f"ds_read_b64 v[28:29], v26 offset:{XST}\ns_waitcnt lgkmcnt(0)\nv_mov_b32 v24, v28")
    red8("v24")
    a(f"v_mul_f32 v24, {f32(1/7)}, v24\nv_sub_f32 v28, v28, v24\nv_mul_f32 v28, v28, v28\nv_fma_f32 v25, v28, v27, v29")
    red8("v25")
    a(f"v_mul_f32 v25, {f32(1/448)}, v25")
    round2("v24", "v25", "v3")
    a(f"v_add_f32 v25, {f32(1e-5)}, v25"); round1("v25")
    a("v_sqrt_f32 v25, v25"); round1("v25")
    a("v_rcp_f32 v25, v25")
    for i in range(8): a(f"v_sub_f32 v{16+i}, v{16+i}, v24")
    for d in range(4): round2(f"v{16+2*d}", f"v{17+2*d}", "v3")
    for i in range(8): a(f"v_mul_f32 v{16+i}, v{16+i}, v25")
    for d in range(4): a(f"v_cvt_pk_bf16_f32 v{8+d}, v{16+2*d}, v{17+2*d}")
    a.vm_wait("q0"); transpose_inplace(W0)
    a.vm_wait("q1"); transpose_inplace(W1)
    mod_compute(RED, RC0, creg=12, skip="s_cmp_ge_u32 s29, 26")
    stamp(5)
    a(f"v_mul_u32_u24 v30, 5376, v7\nv_add_u32 v30, v30, v6\ns_mov_b32 s32, {DUAL}")
    poll_dual([f"buffer_load_dwordx4 v[16:19], v30, {WS}, 0 offen offset:{MOD_OFF} sc1",
               f"buffer_load_dwordx4 v[20:23], v30, {WS}, 0 offen offset:{MOD_OFF+896} sc1",
               f"buffer_load_dwordx4 {vr(W2)}, v30, {WS}, s32 offen offset:{MOD_OFF} sc1",
               f"buffer_load_dwordx4 {vr(W2+4)}, v30, {WS}, s32 offen offset:{MOD_OFF+896} sc1"],
              [(16+k, W2+k) for k in range(8)])
    lds_inc(CRIT)
    stamp(1)
    for d in range(4):
        unpack2("v28", "v29", f"v{20+d}")
        a("v_add_f32 v28, 1.0, v28\nv_add_f32 v29, 1.0, v29"); round2("v28", "v29", "v3")
        unpack2("v24", "v25", f"v{8+d}")
        a("v_mul_f32 v24, v24, v28\nv_mul_f32 v25, v25, v29"); round2("v24", "v25", "v3")
        unpack2("v28", "v29", f"v{16+d}")
        a(f"v_add_f32 v24, v24, v28\nv_add_f32 v25, v25, v29\nv_cvt_pk_bf16_f32 v{12+d}, v24, v25")
    gemv8_finish(W0, GU, RC1)
    gemv8_finish(W1, GU + 14336, RC2)
    a("s_cmp_lg_u32 s3, 0\ns_cbranch_scc1 L_pq1")
    reduce_publish(GU, RC1, 8192, f"s_lshl_b32 s33, s29, 8\ns_add_u32 s33, s33, {Q_OFF}")
    a("L_pq1:\ns_cmp_lg_u32 s3, 1\ns_cbranch_scc1 L_pq2")
    reduce_publish(GU + 14336, RC2, 8192, f"s_lshl_b32 s33, s29, 8\ns_add_u32 s33, s33, {Q_OFF+128}")
    a("L_pq2:")
    stamp(2)

    a("L_svc_w:\ns_setprio 0\ns_waitcnt vmcnt(0)")
    a.vm_reset()
    srd(8, 44, 4096*896); srd(12, 52, 1792*896); srd(16, 48, 448*3584); srd(20, 50, 448*3584)
    block_voff("v1", 896); block_voff("v8", 3584)
    a(f"""s_lshl_b32 s30, s4, 9
    s_lshl_b32 s31, s6, 6
    s_add_u32 s30, s30, s31
    s_mul_i32 s34, s30, 896
    s_lshl_b32 s31, s3, 7
    s_add_u32 s34, s34, s31
    s_add_u32 s35, s34, {256*896}
    s_cmp_eq_u32 s28, 2
    s_cbranch_scc1 L_svc_wo
    s_mul_i32 s100, s3, {64*3584}
    s_lshl_b32 s30, s7, 7
    s_add_u32 s100, s100, s30
    s_mov_b32 s101, s100
    s_lshl_b32 s33, s3, 13
    s_add_u32 s33, s33, {GU}""")
    dma_block("s33", "v8", 16, "s100", 3584, pace=dw)
    a(f"s_add_u32 s33, s33, {7*8192}")
    dma_block("s33", "v8", 20, "s101", 3584, pace=dw)
    a(f"s_mul_i32 s100, s7, {64*896}\ns_add_u32 s100, s100, s31")
    load_block(W2, "v1", 12, "s100", 896, pace=dw, tag="wd")
    a("L_svc_wo:")
    load_block(W0, "v1", 8, "s34", 896, pace=dw, tag="wo0", fill={dw: lambda: (a.vm_wait("wd"), transpose_inplace(W2))})
    load_block(W1, "v1", 8, "s35", 896, pace=dw, tag="wo1", fill={dw: lambda: (a.vm_wait("wo0"), transpose_inplace(W0))})
    a.vm_wait("wo1"); transpose_inplace(W1)
    a(f"""v_lshrrev_b32 v3, 4, v0
    v_and_b32 v4, 1, v0
    v_lshl_add_u32 v4, v3, 1, v4
    v_bfe_u32 v5, v0, 1, 2
    v_lshlrev_b32 v5, 4, v5
    v_lshl_add_u32 v9, v4, 6, v5
    v_and_b32 v5, 7, v0
    v_lshlrev_b32 v5, 5, v5
    v_lshrrev_b32 v11, 5, v0
    v_lshl_add_u32 v11, v11, 4, v5
    s_lshl_b32 s30, s5, 5
    s_lshl_b32 s31, s4, 2
    s_add_u32 s31, s31, s6
    s_add_u32 s31, s31, s30
    s_mul_i32 s34, s31, 1792
    s_lshl_b32 s33, s3, 8
    s_add_u32 s34, s34, s33
    s_add_u32 s34, s34, {PA_OFF}
    s_mul_i32 s35, s30, 1792
    s_add_u32 s35, s35, s33
    s_add_u32 s35, s35, {PA_OFF}
    s_mul_i32 s100, s5, 28
    s_add_u32 s100, s100, s7
    s_mul_i32 s100, s100, 1792
    s_add_u32 s100, s100, s33
    s_add_u32 s100, s100, {PD_OFF}
    v_mul_u32_u24 v1, 1792, v3
    v_and_b32 v4, 15, v0
    v_lshl_add_u32 v1, v4, 4, v1
    v_lshl_add_u32 v8, v4, 2, v3
    s_lshl_b32 s30, s3, 6
    v_add_u32 v8, s30, v8""")
    for r in range(1, 8): a(f"s_add_u32 s{68+r}, s35, {r*4*1792}")
    a("s_mov_b32 s68, s35")
    stamp(3)
    a("s_setprio 3\nL_svc_tail:")
    guard("s_barrier")
    a(f"""ds_read_b128 v[20:23], v9 offset:{OACC}
    ds_read_b128 v[24:27], v9 offset:{OACC+512}
    s_waitcnt lgkmcnt(1)
    v_cvt_f32_f64 v20, v[20:21]
    v_cvt_f32_f64 v22, v[22:23]
    s_waitcnt lgkmcnt(0)
    v_cvt_f32_f64 v24, v[24:25]
    v_cvt_pk_bf16_f32 v12, v20, v22
    v_cvt_f32_f64 v26, v[26:27]
    v_cvt_pk_bf16_f32 v16, v24, v26""")
    for A0 in (12, 16):
        for d in range(1, 4): a(f"v_mov_b32_dpp v{A0+d}, v{A0} row_ror:{16-2*d} row_mask:0xf bank_mask:0xf")
    for j in range(8): a(f"v_mfma_f32_16x16x32_bf16 {vr(W0+4*j)}, v[12:15], {vr(W0+4*j)}, 0")
    for j in range(8): a(f"v_mfma_f32_16x16x32_bf16 {vr(W0+4*j)}, v[16:19], {vr(W1+4*j)}, {vr(W0+4*j)}")
    for j in range(8): a(f"v_add_f32_dpp v{20+(j&3)}, v{W0+4*j+1}, v{W0+4*j} row_ror:8 row_mask:{1<<(2*(j>>2)):#x} bank_mask:0x3")
    guard(setexec(0x000000FF000000FF) + f"\nbuffer_store_dwordx4 v[20:23], v11, {WS}, s34 offen sc1\ns_mov_b64 exec, -1")
    stamp(4)
    Lp = a.label("notP")
    if dry: a(f"s_cbranch_execz {Lp}")
    a(f"s_cmp_lg_u32 s28, 2\ns_cbranch_scc1 {Lp}"); finish(); a(f"{Lp}:")
    gl = "\n".join(f"buffer_load_dwordx4 {vr(W0+4*r)}, v1, {WS}, s{68+r} offen sc1" for r in range(8))
    guard(gl)
    a(f"s_lshl_b32 s33, s3, 13\ns_add_u32 s33, s33, {GU}\ns_mov_b32 s32, {GUACC}")
    def g_prep():
        a("v_lshlrev_b32 v3, 4, v0\nv_add_u32 v3, s33, v3")
        for i in range(8): a(f"ds_read_b128 {vr(W1+4*i)}, v3 offset:{i*1024}")
        a(f"""v_lshrrev_b32 v3, 4, v0
        v_and_b32 v4, 1, v0
        v_lshl_add_u32 v3, v3, 1, v4
        v_bfe_u32 v4, v0, 1, 2
        v_lshlrev_b32 v4, 1, v4
        v_lshl_add_u32 v12, v3, 3, v4
        s_lshl_b32 s30, s3, 6
        v_add_u32 v13, s30, v12
        v_lshlrev_b32 v3, 1, v13
        ds_read_b32 v14, v3 offset:{MODL+896}
        ds_read_b32 v16, v3 offset:{MODL+1792}
        v_lshlrev_b32 v13, 2, v13
        v_lshlrev_b32 v12, 3, v12
        v_and_b32 v3, 7, v0
        v_cmp_gt_u32 vcc, 7, v3
        v_cndmask_b32 v18, 0, v3, vcc
        v_mov_b32 v4, {f32(1/7)}
        v_cndmask_b32 v20, 0, v4, vcc
        v_mov_b32 v4, {f32(1/448)}
        v_cndmask_b32 v21, 0, v4, vcc
        v_lshlrev_b32 v19, 8, v18
        v_lshlrev_b32 v18, 3, v18
        v_lshlrev_b32 v3, 5, v3
        v_lshrrev_b32 v4, 5, v0
        v_lshl_add_u32 v3, v4, 4, v3
        v_bfe_u32 v4, v0, 3, 1
        v_lshl_add_u32 v3, v4, 2, v3
        v_lshlrev_b32 v3, 1, v3
        v_add_u32 v22, s32, v3
        s_waitcnt lgkmcnt(0)""")
        unpack2("v14", "v15", "v14"); unpack2("v16", "v17", "v16")
        a("v_add_f32 v16, 1.0, v16\nv_add_f32 v17, 1.0, v17"); round2("v16", "v17", "v3")
        transpose_inplace(W1)
    g_prep()
    a(f"""v_lshlrev_b32 v3, 1, v8
    ds_read_u16 v23, v3 offset:{MODL}
    ds_read_u16 v24, v3 offset:{XL}
    v_lshlrev_b32 v25, 2, v8
    v_lshrrev_b32 v26, 5, v0
    v_lshlrev_b32 v26, 2, v26
    s_lshl_b32 s30, s3, 3
    v_add_u32 v26, s30, v26
    s_waitcnt lgkmcnt(0)
    v_lshlrev_b32 v23, 16, v23
    v_lshlrev_b32 v24, 16, v24
    s_mov_b32 s31, 0""")
    L = a.label("pa"); D = a.label("pad")
    a(f"{L}:\ns_waitcnt vmcnt(0)")
    check(range(W0, W0+32), "v3")
    a(f"s_cbranch_vccz {D}\ns_add_u32 s31, s31, 1\ns_cmp_ge_u32 s31, {SPIN_MAX}\ns_cbranch_scc1 {D}")
    a(gl); a(f"s_branch {L}\n{D}:")
    stamp(5)
    for st in (16, 8, 4):
        for k in range(0, st, 2): a(f"v_pk_add_f32 v[{W0+k}:{W0+k+1}], v[{W0+k}:{W0+k+1}], v[{W0+st+k}:{W0+st+k+1}]")
    a(f"""v_permlane32_swap_b32 v{W0}, v{W0+2}
    v_permlane32_swap_b32 v{W0+1}, v{W0+3}
    v_add_f32 v{W0}, v{W0}, v{W0+2}
    v_add_f32 v{W0+1}, v{W0+1}, v{W0+3}
    v_permlane16_swap_b32 v{W0}, v{W0+1}
    v_add_f32 v27, v{W0}, v{W0+1}""")
    round1("v27"); a("v_mul_f32 v27, v27, v23"); round1("v27"); a("v_add_f32 v27, v27, v24"); round1("v27")
    a(f"""ds_write_b32 v25, v27 offset:{X1L}
    v_readfirstlane_b32 s30, v27
    v_subrev_f32 v28, s30, v27
    v_mul_f32 v29, v28, v28
    v_permlane32_swap_b32 v28, v29
    v_add_f32 v28, v28, v29""")
    row_reduce("v_add_f32", "v28")
    a("v_mov_b32 v29, v28\nv_permlane16_swap_b32 v28, v29\nv_add_f32 v28, v28, v29")
    a(f"ds_write_b32 v26, v28 offset:{STL}\ns_waitcnt lgkmcnt(0)")
    a("L_gstage:")
    guard("s_barrier")
    stamp(7)
    a(f"""ds_read_b64 v[24:25], v18 offset:{STL}
    ds_read_b32 v26, v19 offset:{X1L}
    ds_read_b64 v[28:29], v13 offset:{X1L}
    s_waitcnt lgkmcnt(1)
    v_mul_f32 v3, {f32(1/64)}, v24
    v_add_f32 v26, v26, v3
    v_fma_f32 v25, -v3, v24, v25
    v_mul_f32 v27, v26, v20""")
    row_reduce("v_add_f32", "v27", (1, 2, 4))
    a(f"v_sub_f32 v26, v26, v27\nv_mul_f32 v26, v26, v26\nv_fmac_f32 v25, {f32(64.0)}, v26\nv_mul_f32 v25, v25, v21")
    row_reduce("v_add_f32", "v25", (1, 2, 4))
    round2("v27", "v25", "v3")
    a(f"v_add_f32 v25, {f32(1e-5)}, v25\ns_waitcnt lgkmcnt(0)\nv_sub_f32 v28, v28, v27\nv_cvt_pk_bf16_f32 v25, v25, v25\nv_sub_f32 v29, v29, v27\nv_lshlrev_b32 v25, 16, v25")
    a("v_sqrt_f32 v25, v25"); round2("v28", "v29", "v3"); round1("v25")
    a("v_rcp_f32 v25, v25\nv_mul_f32 v28, v28, v25\nv_mul_f32 v29, v29, v25"); round2("v28", "v29", "v3")
    a("v_mul_f32 v28, v28, v16\nv_mul_f32 v29, v29, v17"); round2("v28", "v29", "v3")
    a("v_add_f32 v28, v28, v14\nv_add_f32 v29, v29, v15\nv_cvt_pk_bf16_f32 v24, v28, v29")
    for d in range(1, 4): a(f"v_mov_b32_dpp v{24+d}, v24 row_ror:{16-2*d} row_mask:0xf bank_mask:0xf")
    for j in range(8): a(f"v_mfma_f32_16x16x32_bf16 {vr(W1+4*j)}, v[24:27], {vr(W1+4*j)}, 0")
    for j in range(8):
        Dj = W1 + 4*j; up = j & 1
        a(f"v_add_f32_dpp v{28+((j>>1)&1)}, v{Dj+1-up}, v{Dj+up} row_ror:8 row_mask:{1<<(2*(j>>2)):#x} bank_mask:{0xc if up else 0x3:#x}")
    a("v_cvt_f64_f32 v[24:25], v28\nv_cvt_f64_f32 v[26:27], v29")
    guard(setexec(0x0000FFFF0000FFFF) + "\nds_add_f64 v22, v[24:25]\nds_add_f64 v22, v[26:27] offset:16\ns_mov_b64 exec, -1\ns_waitcnt lgkmcnt(0)\ns_barrier")
    Lq = a.label("isgate")
    if dry: a(f"s_cbranch_execz {Lq}")
    a(f"s_cmp_eq_u32 s32, {GUACC}\ns_cbranch_scc1 {Lq}"); finish(); a(f"{Lq}:")
    a(f"ds_read_b128 v[24:27], v12 offset:{GUACC}\nds_read_b128 v[28:31], v12 offset:{GUACC+512}\ns_waitcnt lgkmcnt(1)")
    a("v_cvt_f32_f64 v24, v[24:25]\nv_cvt_f32_f64 v25, v[26:27]")
    round2("v24", "v25", "v3")
    a(f"v_mul_f32 v24, {f32(-math.log2(math.e))}, v24\nv_mul_f32 v25, {f32(-math.log2(math.e))}, v25\nv_exp_f32 v24, v24\nv_exp_f32 v25, v25\ns_waitcnt lgkmcnt(0)")
    a("v_cvt_f32_f64 v28, v[28:29]\nv_cvt_f32_f64 v29, v[30:31]")
    a("v_cvt_pk_bf16_f32 v3, v28, v29\nv_add_f32 v24, 1.0, v24\nv_add_f32 v25, 1.0, v25\nv_rcp_f32 v24, v24\nv_rcp_f32 v25, v25")
    unpack2("v28", "v29", "v3"); round2("v24", "v25", "v3")
    a("v_mul_f32 v24, v24, v28\nv_mul_f32 v25, v25, v29\nv_cvt_pk_bf16_f32 v24, v24, v25")
    for d in range(1, 4): a(f"v_mov_b32_dpp v{24+d}, v24 row_ror:{16-2*d} row_mask:0xf bank_mask:0xf")
    for j in range(8): a(f"v_mfma_f32_16x16x32_bf16 {vr(W2+4*j)}, v[24:27], {vr(W2+4*j)}, 0")
    for j in range(8): a(f"v_add_f32_dpp v{28+(j&3)}, v{W2+4*j+1}, v{W2+4*j} row_ror:8 row_mask:{1<<(2*(j>>2)):#x} bank_mask:0x3")
    guard(setexec(0x000000FF000000FF) + f"\nbuffer_store_dwordx4 v[28:31], v11, {WS}, s100 offen sc1\ns_mov_b64 exec, -1")
    stamp(6)
    if dry: a("s_cbranch_execz L_dry2")
    finish()

    a("L_stream:")
    a(f"""s_lshl_b32 s30, s5, 3
    s_add_u32 s30, s30, s4
    s_lshl_b32 s31, s30, 22
    s_add_u32 s31, s31, 0x300000
    v_and_b32 v3, 7, v0
    v_lshlrev_b32 v1, 9, v3
    v_bfe_u32 v4, v0, 3, 1
    v_lshl_add_u32 v1, v4, 4, v1
    v_lshrrev_b32 v4, 4, v0
    v_lshl_add_u32 v1, v4, 5, v1
    v_lshrrev_b32 v4, 3, v0
    v_lshlrev_b32 v4, 12, v4
    v_lshl_add_u32 v14, v3, 4, v4
    s_lshl_b32 s32, s6, 15
    s_lshl_b32 s33, s3, 12
    s_add_u32 s34, s32, s33
    s_lshl_b32 s32, s6, 7
    s_lshl_b32 s33, s3, 15
    s_add_u32 s35, s32, s33
    s_barrier
    s_waitcnt lgkmcnt(0)
    s_add_u32 s8, s38, s31
    s_addc_u32 s9, s39, 0
    s_mov_b32 s10, 0x100000
    s_mov_b32 s11, 0x20000
    s_add_u32 s12, s40, s31
    s_addc_u32 s13, s41, 0
    s_mov_b32 s14, 0x100000
    s_mov_b32 s15, 0x20000""")
    ws_srd()
    a("s_cmp_eq_u32 s28, 0\ns_cbranch_scc1 L_st_go")
    lds_spin(CRIT, 7)
    a("L_st_go:")
    a.vm_reset()
    kslot = lambda t: 32 + 16*(t % 6)
    nk = [0]
    def kload(t, j):
        if nk[0] >= dk: a.vm_pace(dk)
        nk[0] += 1
        a.vmem(f"buffer_load_dwordx4 {vr(kslot(t)+4*j)}, v1, s[8:11], s34 offen offset:{j*128} {pol}", f"k{t}")
        if j == 3: a(f"s_add_u32 s34, s34, {4*32768}")
    def kmm(t):
        a.vm_wait(f"k{t}")
        D = 4 + 4*(t & 1)
        for j in range(4): a(f"v_mfma_f32_16x16x32_bf16 {vr(D)}, {vr(16+4*j)}, {vr(kslot(t)+4*j)}, {vr(D) if j else 0}")
    def kfin(t):
        D = 4 + 4*(t & 1); up = t & 1
        for h in range(2):
            a(f"v_add_f32_dpp v{12+h}, v{D+h+(0 if up else 2)}, v{D+h+(2 if up else 0)} row_ror:8 row_mask:{1<<(t>>1):#x} bank_mask:{0xc if up else 0x3:#x}")
    for t in range(6):
        for j in range(4): kload(t, j)
    stamp(1)
    lds_spin(FQ, 1)
    stamp(2)
    a(f"""v_and_b32 v3, 1, v0
    v_lshlrev_b32 v3, 9, v3
    v_bfe_u32 v4, v0, 1, 1
    v_lshl_add_u32 v3, v4, 4, v3
    v_lshrrev_b32 v4, 4, v0
    v_lshl_add_u32 v3, v4, 5, v3""")
    for j in range(4): a(f"ds_read_b128 {vr(16+4*j)}, v3 offset:{QL+j*128}")
    a("s_waitcnt lgkmcnt(0)")
    kmm(0); kload(6, 0); kmm(1); kfin(0); kload(6, 1); kfin(1); kmm(2); kload(6, 2); kfin(2); kmm(3); kload(6, 3); kfin(3)
    kload(7, 0); kmm(4); kload(7, 1); kfin(4); kmm(5); kload(7, 2); kfin(5); kload(7, 3)
    vreg = lambda r: 64 if r % 2 == 0 else 32
    def vphase(d):
        vm0 = list(a.vm)
        def vload(r, i):
            a.vm_pace(d)
            a.vmem(f"buffer_load_dwordx4 {vr(vreg(r)+4*i)}, v14, s[12:15], s35 offen offset:{i*512} {pol}", f"v{r}_{i}")
            if i == 7: a(f"s_add_u32 s35, s35, {8*32768}")
        def publish():
            a(f"""v_cvt_pk_bf16_f32 v96, v12, v13
            s_lshl_b32 s30, s5, 3
            s_add_u32 s30, s30, s4
            s_lshl_b32 s31, s6, 3
            s_add_u32 s31, s31, s3
            v_min_u32 v96, -2, v96
            s_lshl_b32 s32, s30, 13
            s_lshl_b32 s33, s31, 8
            s_add_u32 s32, s32, s33
            s_add_u32 s32, s32, {SC_OFF}
            v_lshlrev_b32 v3, 2, v0""")
            a.vmem(f"buffer_store_dword v96, v3, {WS}, s32 offen sc1")
            unpack2("v12", "v13", "v96")
            a("v_mov_b32 v100, v12\nv_mov_b32 v102, v13")
            for n in (1, 2, 4, 8):
                for v in ("v100", "v102"): a(f"v_max_f32_dpp {v}, {v}, {v} row_ror:{n} row_mask:0xf bank_mask:0xf")
            xrow_reduce("v_max_f32", "v100", "v3"); xrow_reduce("v_max_f32", "v102", "v97")
            a(f"""v_sub_f32 v101, v12, v100
            v_sub_f32 v103, v13, v102
            v_mul_f32 v101, {CEXP}, v101
            v_mul_f32 v103, {CEXP}, v103
            v_exp_f32 v101, v101
            v_exp_f32 v103, v103""")
            for n in (1, 2, 4, 8):
                for v in ("v101", "v103"): a(f"v_add_f32_dpp {v}, {v}, {v} row_ror:{n} row_mask:0xf bank_mask:0xf")
            xrow_reduce("v_add_f32", "v101", "v3"); xrow_reduce("v_add_f32", "v103", "v97")
            a(f"s_lshl_b32 s32, s30, 9\ns_lshl_b32 s33, s31, 4\ns_add_u32 s32, s32, s33\ns_add_u32 s32, s32, {ST_OFF}\ns_mov_b64 exec, 1")
            a.vmem(f"buffer_store_dwordx4 v[100:103], v2, {WS}, s32 offen sc1")
            a("s_mov_b64 exec, -1")
            lds_inc(KDONE)
            stamp(3)
            for k in range(16, 32): a(f"v_mov_b32 v{k}, 0")
        def softmax():
            lds_spin(FP, 1)
            stamp(4)
            a(f"""v_lshrrev_b32 v3, 4, v0
            v_bfe_u32 v4, v0, 1, 1
            v_lshl_add_u32 v3, v3, 1, v4
            v_lshlrev_b32 v3, 8, v3
            v_bfe_u32 v4, v0, 2, 2
            v_lshl_add_u32 v3, v4, 6, v3
            s_and_b32 s30, s3, 3
            s_lshl_b32 s30, s30, 11
            s_lshr_b32 s31, s3, 2
            s_lshl_b32 s31, s31, 5
            s_add_u32 s30, s30, s31
            v_add_u32 v3, s30, v3
            ds_read_b128 v[108:111], v3 offset:{SCL}
            ds_read_b128 v[112:115], v3 offset:{SCL+16}
            v_and_b32 v4, 1, v0
            v_lshlrev_b32 v5, 3, v4
            ds_read_b64 v[116:117], v5 offset:{MS}
            v_mul_u32_u24 v4, 0x0202, v4
            v_lshlrev_b32 v4, 16, v4
            v_add_u32 v4, 0x05040c0c, v4
            s_waitcnt lgkmcnt(0)""")
            for i in range(8): a(f"v_perm_b32 v{108+i}, v{108+i}, v{108+i}, v4")
            for i in range(8): a(f"v_fma_f32 v{108+i}, v{108+i}, {CEXP}, -v116")
            for i in range(8): a(f"v_exp_f32 v{108+i}, v{108+i}")
            for i in range(8): a(f"v_mul_f32 v{108+i}, v{108+i}, v117")
            for k in range(4): a(f"v_cvt_pk_bf16_f32 v{96+k}, v{108+2*k}, v{109+2*k}")
        def amake(r):
            for jj in range(4):
                n = (4*(jj - r)) % 16
                for k in range(4):
                    a(f"v_mov_b32_dpp v{16+4*jj+k}, v{96+k} " + (f"row_ror:{n}" if n else "quad_perm:[0,1,2,3]") + f" row_mask:0xf bank_mask:{1<<jj:#x}")
        def pv(r, js):
            R = vreg(r)
            for j in js:
                T = 108 + 4*(j & 3)
                for i2 in range(4): a(f"v_perm_b32 v{T+i2}, v{R+8*i2+4+(j>>1)}, v{R+8*i2+(j>>1)}, {SELHI if j & 1 else SELLO}")
                D = 100 + 4*(j >> 2)
                a(f"v_mfma_f32_16x16x32_bf16 {vr(D)}, {vr(16+4*(j&3))}, {vr(T)}, {vr(D) if (r or j & 3) else 0}")
        for i in range(8):
            vload(0, i)
            if i == 0: kmm(6)
            if i == 1: kfin(6)
            if i == d - 1: kmm(7); kfin(7); publish()
        for i in range(8): vload(1, i)
        softmax(); amake(0); a.vm_wait("v0_7"); pv(0, range(8))
        for i in range(8):
            vload(2, i)
            if i == 0: amake(1)
            if i >= d - 1 and i - (d - 1) < 4:
                if i == d - 1: a.vm_wait("v1_7")
                k = i - (d - 1); pv(1, [2*k, 2*k+1])
        for i in range(8):
            vload(3, i)
            if i == 0: amake(2)
            if i >= d - 1 and i - (d - 1) < 4:
                if i == d - 1: a.vm_wait("v2_7")
                k = i - (d - 1); pv(2, [2*k, 2*k+1])
        assert d - 1 + 3 <= 7
        a.vm = vm0
    a("s_cmp_eq_u32 s6, 3\ns_cbranch_scc1 L_v3")
    vphase(dv); a("s_branch L_vlast\nL_v3:"); vphase(dv3)
    a("L_vlast:\ns_nop 1")
    for jj in range(4):
        n = (4*(jj - 3)) % 16
        for k in range(4):
            a(f"v_mov_b32_dpp v{16+4*jj+k}, v{96+k} " + (f"row_ror:{n}" if n else "quad_perm:[0,1,2,3]") + f" row_mask:0xf bank_mask:{1<<jj:#x}")
    a(f"""v_and_b32 v3, 7, v0
    v_lshlrev_b32 v3, 5, v3
    v_lshrrev_b32 v4, 4, v0
    v_lshl_add_u32 v3, v4, 2, v3
    v_lshlrev_b32 v3, 1, v3
    s_mov_b32 s30, 0xff00ff00
    s_mov_b32 s31, 0xff00ff00""")
    a("L_st_tail:")
    for i2 in range(4):
        a(f"s_waitcnt vmcnt({6-2*i2})")
        for j in range(8): a(f"v_perm_b32 v{64+4*j+i2}, v{32+8*i2+4+(j>>1)}, v{32+8*i2+(j>>1)}, {SELHI if j & 1 else SELLO}")
    for j in (0, 4, 1, 5, 2, 6, 3, 7):
        D = 100 + 4*(j >> 2)
        a(f"v_mfma_f32_16x16x32_bf16 {vr(D)}, {vr(16+4*(j&3))}, {vr(64+4*j)}, {vr(D)}")
    for jh in range(2):
        for h in range(2): a(f"v_cndmask_b32 v{108+2*jh+h}, v{100+4*jh+h}, v{100+4*jh+2+h}, s[30:31]")
    for jh in range(2):
        for h in range(2): a(f"v_cvt_f64_f32 v[{112+4*jh+2*h}:{113+4*jh+2*h}], v{108+2*jh+h}\nds_add_f64 v3, v[{112+4*jh+2*h}:{113+4*jh+2*h}] offset:{OACC+h*512+jh*32}")
    a("s_waitcnt lgkmcnt(0)")
    stamp(5)
    guard("s_barrier")
    Ls = a.label("up")
    if dry: a(f"s_cbranch_execz {Ls}")
    a(f"s_cmp_eq_u32 s28, 2\ns_cbranch_scc1 L_st_end\ns_cmp_eq_u32 s3, 7\ns_cbranch_scc1 L_st_end\n{Ls}:")
    a(f"s_lshl_b32 s33, s3, 13\ns_add_u32 s33, s33, {GU+7*8192}\ns_mov_b32 s32, {GUACC+512}")
    g_prep()
    if dry: a("s_cbranch_execz L_svc_tail")
    a("s_setprio 3")
    a("s_branch L_gstage\nL_st_end:"); finish()

    a(f"""L_comm:
    v_mov_b32 v4, 0
    v_mov_b32 v5, 0
    v_mov_b32 v6, 0
    v_mov_b32 v7, 0
    v_lshlrev_b32 v1, 4, v0
    ds_write_b128 v1, v[4:7]
    ds_write_b128 v1, v[4:7] offset:1024
    ds_write_b128 v1, v[4:7] offset:2048
    s_setprio 3
    s_waitcnt lgkmcnt(0)
    s_barrier""")
    tag_load(); ws_srd()
    a(f"""v_mov_b32 v4, -1
    v_mov_b32 v5, -1
    v_mov_b32 v6, -1
    v_mov_b32 v7, -1
    s_lshl_b32 s34, s5, 3
    s_add_u32 s34, s34, s4
    s_lshl_b32 s30, s34, 13
    s_lshl_b32 s31, s6, 11
    s_add_u32 s30, s30, s31
    s_add_u32 s30, s30, {SC_OFF}
    buffer_store_dwordx4 v[4:7], v1, {WS}, s30 offen sc1
    buffer_store_dwordx4 v[4:7], v1, {WS}, s30 offen offset:1024 sc1
    s_lshl_b32 s30, s5, 5
    s_lshl_b32 s31, s4, 2
    s_add_u32 s30, s30, s31
    s_add_u32 s30, s30, s6
    s_mul_i32 s30, s30, 1792
    s_add_u32 s30, s30, {PA_OFF}
    s_mul_i32 s31, s5, 28
    s_add_u32 s31, s31, s7
    s_mul_i32 s31, s31, 1792
    s_add_u32 s31, s31, {PD_OFF}
    s_cmp_eq_u32 s28, 2
    s_cselect_b32 s31, s30, s31
    buffer_store_dwordx4 v[4:7], v1, {WS}, s30 offen sc1
    buffer_store_dwordx4 v[4:7], v1, {WS}, s31 offen sc1
    s_mov_b32 exec_hi, 0xffff
    buffer_store_dwordx4 v[4:7], v1, {WS}, s30 offen offset:1024 sc1
    buffer_store_dwordx4 v[4:7], v1, {WS}, s31 offen offset:1024 sc1
    s_lshl_b32 s30, s34, 9
    s_lshl_b32 s31, s6, 7
    s_add_u32 s30, s30, s31
    s_add_u32 s30, s30, {ST_OFF}
    s_mov_b64 exec, 0xff
    buffer_store_dwordx4 v[4:7], v1, {WS}, s30 offen sc1
    s_mov_b64 exec, 1
    s_lshl_b32 s30, s5, 5
    s_lshl_b32 s31, s4, 2
    s_add_u32 s30, s30, s31
    s_add_u32 s30, s30, s6
    s_lshl_b32 s30, s30, 2
    s_add_u32 s30, s30, {CERT_OFF}""")
    tag_wait()
    a("s_cmp_eq_u32 s28, 0\ns_cbranch_scc1 L_c_cert")
    lds_spin(CRIT, 7, st="s31")
    a(f"""L_c_cert:
    v_mov_b32 v3, {TAG}
    s_waitcnt vmcnt(0)
    buffer_store_dword v3, v2, {WS}, s30 offen sc1
    s_mov_b64 exec, -1""")
    stamp(1)
    a(f"s_lshl_b32 s30, s5, 13\ns_lshl_b32 s31, s4, 10\ns_add_u32 s30, s30, s31\ns_add_u32 s30, s30, {Q_OFF}\ns_add_u32 s32, s30, {DUAL}")
    poll_dual([f"buffer_load_dwordx4 v[12:15], v1, {WS}, s30 offen sc1", f"buffer_load_dwordx4 v[16:19], v1, {WS}, s32 offen sc1"], [(12+k, 16+k) for k in range(4)], cnt="s33")
    a(f"ds_write_b128 v1, v[12:15] offset:{QL}\nv_mov_b32 v3, 1\ns_waitcnt lgkmcnt(0)\nds_write_b32 v2, v3 offset:{FQ}")
    stamp(2)
    a("s_cmp_eq_u32 s28, 2\ns_cbranch_scc1 L_c_nomodg")
    srd(96, 36, 7168)
    a(f"""s_mul_i32 s30, s5, 896
    s_mov_b32 exec_hi, 0xffffff
    buffer_load_dwordx4 v[28:31], v1, s[96:99], s30 offen
    s_mov_b32 exec_hi, -1
    s_mul_i32 s30, s5, 5376
    s_add_u32 s30, s30, {MOD_OFF+1792}
    s_add_u32 s32, s30, {DUAL}
    v_and_b32 v3, 31, v0
    v_lshlrev_b32 v8, 4, v3""")
    poll_dual([f"buffer_load_dwordx4 {vr(12+4*k)}, {'v1' if k < 3 else 'v8'}, {WS}, s30 offen offset:{k*1024} sc1" for k in range(4)] +
              [f"buffer_load_dwordx4 {vr(32+4*k)}, {'v1' if k < 3 else 'v8'}, {WS}, s32 offen offset:{k*1024} sc1" for k in range(4)],
              [(12+k, 32+k) for k in range(16)], cnt="s33")
    for k in range(4): a(f"ds_write_b128 {'v1' if k < 3 else 'v8'}, {vr(12+4*k)} offset:{MODL+k*1024}")
    a(f"s_mov_b32 exec_hi, 0xffffff\nds_write_b128 v1, v[28:31] offset:{XL}\ns_mov_b32 exec_hi, -1\nL_c_nomodg:")
    stamp(6)
    a(f"""v_and_b32 v3, 7, v0
    v_lshlrev_b32 v3, 4, v3
    s_lshl_b32 s30, s5, 7
    v_add_u32 v3, s30, v3
    s_cmp_eq_u32 s2, 0
    s_cselect_b64 vcc, -1, 0
    v_cndmask_b32 v10, v3, v1, vcc
    v_mov_b32 v16, 0
    s_mov_b32 s30, {CERT_OFF}""")
    L = a.label("cert"); D = a.label("certd")
    a(f"""s_mov_b32 s33, 0
    {L}:
    buffer_load_dwordx4 v[12:15], v10, {WS}, s30 offen sc1
    s_waitcnt vmcnt(0)
    v_xor_b32 v12, {TAG}, v12
    v_xor_b32 v13, {TAG}, v13
    v_xor_b32 v14, {TAG}, v14
    v_xor_b32 v15, {TAG}, v15
    v_or3_b32 v12, v12, v13, v14
    v_or_b32 v12, v12, v15
    v_cmp_ne_u32 vcc, 0, v12
    s_cbranch_vccz {D}
    s_add_u32 s33, s33, 1
    s_cmp_lt_u32 s33, {SPIN_MAX}
    s_cbranch_scc1 {L}
    {D}:
    s_cmp_lg_u32 s2, 0
    s_cbranch_scc1 L_c_notag
    v_mov_b32 v3, {TAG}
    s_mov_b32 s30, {XN_OFF}
    s_mov_b64 exec, 1
    buffer_store_dword v3, v2, {WS}, s30 offen sc1
    s_mov_b64 exec, -1
    L_c_notag:""")
    stamp(3)
    if diag: a("s_waitcnt lgkmcnt(0)\ns_mov_b32 s83, s92")
    if dry: a("s_mov_b64 exec, 0\ns_branch L_st_tail\nL_dry2:\ns_branch L_final\nL_dry3:\ns_nop 7\ns_mov_b64 exec, -1")
    lds_spin(KDONE, 8)
    a(f"""s_lshl_b32 s34, s5, 3
    s_add_u32 s34, s34, s4
    s_lshl_b32 s30, s34, 13
    s_add_u32 s30, s30, {SC_OFF}
    s_add_u32 s32, s30, 4096
    s_lshl_b32 s35, s34, 9
    s_add_u32 s35, s35, {ST_OFF}
    v_and_b32 v3, 31, v0
    v_lshlrev_b32 v8, 4, v3""")
    poll([f"buffer_load_dwordx4 v[12:15], v8, {WS}, s35 offen sc1"] +
         [f"buffer_load_dwordx4 {vr(32+4*k)}, v1, {WS}, {'s30' if k < 4 else 's32'} offen offset:{(k&3)*1024} sc1" for k in range(8)],
         list(range(12, 16)) + list(range(32, 64)), cnt="s33")
    stamp(4)
    for k in range(8): a(f"ds_write_b128 v1, {vr(32+4*k)} offset:{SCL+k*1024}")
    a("v_mov_b32 v16, v12\nv_mov_b32 v18, v14")
    for n in (1, 2, 4, 8):
        for v in ("v16", "v18"): a(f"v_max_f32_dpp {v}, {v}, {v} row_ror:{n} row_mask:0xf bank_mask:0xf")
    for v, t in (("v16", "v3"), ("v18", "v4")): a(f"v_mov_b32 {t}, {v}\nv_permlane16_swap_b32 {t}, {v}\nv_max_f32 {v}, {v}, {t}")
    a(f"""v_sub_f32 v12, v12, v16
    v_sub_f32 v14, v14, v18
    v_mul_f32 v12, {CEXP}, v12
    v_mul_f32 v14, {CEXP}, v14
    v_exp_f32 v12, v12
    v_exp_f32 v14, v14
    v_mul_f32 v17, v12, v13
    v_mul_f32 v19, v14, v15""")
    for n in (1, 2, 4, 8):
        for v in ("v17", "v19"): a(f"v_add_f32_dpp {v}, {v}, {v} row_ror:{n} row_mask:0xf bank_mask:0xf")
    for v, t in (("v17", "v3"), ("v19", "v4")): a(f"v_mov_b32 {t}, {v}\nv_permlane16_swap_b32 {t}, {v}\nv_add_f32 {v}, {v}, {t}")
    a(f"""v_rcp_f32 v17, v17
    v_rcp_f32 v19, v19
    v_mul_f32 v16, {CEXP}, v16
    v_mul_f32 v18, {CEXP}, v18
    v_mov_b32 v3, 1
    ds_write_b128 v2, v[16:19] offset:{MS}
    s_waitcnt lgkmcnt(0)
    ds_write_b32 v2, v3 offset:{FP}
    s_mul_i32 s30, s5, {28*1792}
    s_lshl_b32 s31, s7, 6
    s_add_u32 s30, s30, s31
    s_add_u32 s68, s30, {PD_OFF}
    s_add_u32 s69, s68, {2*1792}
    s_add_u32 s70, s68, {4*1792}
    s_add_u32 s71, s68, {6*1792}
    v_lshrrev_b32 v3, 4, v0
    v_mul_u32_u24 v3, {7*1792}, v3
    v_and_b32 v4, 15, v0
    v_lshl_add_u32 v8, v4, 2, v3
    s_lshl_b32 s30, s7, 4
    v_add_u32 v9, s30, v4
    v_lshlrev_b32 v10, 2, v9
    v_lshlrev_b32 v9, 1, v9
    s_mul_i32 s72, s5, 896""")
    srd(96, 58, 7168)
    a("s_waitcnt lgkmcnt(0)\ns_barrier\ns_cmp_eq_u32 s28, 2\ns_cbranch_scc1 L_st_end\ns_barrier")
    a(f"ds_read_b32 v20, v10 offset:{X1L}\nds_read_u16 v21, v9 offset:{MODL+2688}\ns_waitcnt lgkmcnt(0)\nv_lshlrev_b32 v21, 16, v21\ns_barrier")
    stamp(5)
    a("L_final:\ns_mov_b32 s33, 0")
    L = a.label("pd"); D = a.label("pdd")
    a(f"{L}:")
    guard("\n".join(f"buffer_load_dword v{12+k}, v8, {WS}, s{68+(k>>1)} offen offset:{(k&1)*1792} sc1" for k in range(7)))
    a("s_waitcnt vmcnt(0)")
    check(range(12, 19), "v3")
    a(f"s_cbranch_vccz {D}\ns_add_u32 s33, s33, 1\ns_cmp_lt_u32 s33, {SPIN_MAX}\ns_cbranch_scc1 {L}\n{D}:")
    stamp(6)
    a("v_add_f32 v12, v12, v13\nv_add_f32 v14, v14, v15\nv_add_f32 v16, v16, v17\nv_add_f32 v12, v12, v18\nv_add_f32 v14, v14, v16\nv_add_f32 v12, v12, v14")
    xrow_reduce("v_add_f32", "v12", "v3")
    round1("v12"); a("v_mul_f32 v12, v12, v21"); round1("v12"); a("v_add_f32 v12, v12, v20\nv_cvt_pk_bf16_f32 v12, v12, v12")
    guard("s_mov_b64 exec, 0xffff\nbuffer_store_short v12, v9, s[96:99], s72 offen")
    if dry: a("s_cbranch_execz L_dry3")
    if diag:
        a("s_mov_b64 exec, -1")
        stamp(7)
        a(f"""L_finish:
        s_waitcnt lgkmcnt(0)
        s_mov_b64 exec, -1
        v_mov_b32 v4, 0""")
        for i in range(8): a(f"v_writelane_b32 v4, s{80+2*i}, {i}")
        a("s_cmp_eq_u32 s81, 15\ns_cselect_b32 s30, s83, s80\nv_writelane_b32 v4, s30, 0")
        a(f"""s_getreg_b32 s30, hwreg(HW_REG_HW_ID)
        v_lshrrev_b32 v3, 6, v0
        s_lshl_b32 s30, s2, 9
        v_lshlrev_b32 v3, 2, v0
        s_lshl_b32 s31, s81, 5
        s_add_u32 s30, s30, s31
        s_add_u32 s30, s30, {TS_OFF}
        s_mov_b64 exec, 0xff
        buffer_store_dword v4, v3, {WS}, s30 offen""")
        if dbg:
            a(f"""s_mov_b64 exec, 1
            s_not_b32 s30, s80
            v_mov_b32 v5, s30
            global_atomic_umax v2, v5, s[60:61] sc1
            v_mov_b32 v5, s80
            global_atomic_umax v2, v5, s[60:61] offset:4 sc1
            s_cmp_eq_u32 s81, 15
            s_cbranch_scc0 L_d1
            s_mov_b64 exec, 0xfc
            global_atomic_umax v3, v4, s[60:61] sc1
            L_d1:
            s_cmp_eq_u32 s81, 0
            s_cbranch_scc0 L_d2
            s_mov_b64 exec, 0x3e
            global_atomic_umax v3, v4, s[60:61] offset:32 sc1
            L_d2:
            s_cmp_eq_u32 s81, 8
            s_cbranch_scc0 L_end
            s_mov_b64 exec, 0x18
            global_atomic_umax v3, v4, s[60:61] offset:44 sc1
            s_mov_b64 exec, 0x4
            global_atomic_umax v3, v4, s[60:61] offset:24 sc1""")
    a("L_end:\ns_endpgm")
    body = a.text()
    if diag: body = body.replace("    s_and_b32 s4, s2, 7\n", "    s_waitcnt lgkmcnt(0)\n    s_mov_b32 s81, s3\n    s_and_b32 s4, s2, 7\n", 1)
    hdr = open("adaLN_cond__sliding_block_cached__glu_gated_glu__decode.s.ref").read().split("; Override launch")[0]
    return (hdr + f"; @launch grid=(256,1,1) block=(1024,1,1) lds={LDS_BYTES}\n.amdgcn_target \"amdgcn-amd-amdhsa--gfx950\"\n.text\n.globl {NAME}\n.p2align 8\n.type {NAME},@function\n{NAME}:\n"
            + body + f""".section .rodata,"a"
.p2align 6
.amdhsa_kernel {NAME}
  .amdhsa_next_free_vgpr 128
  .amdhsa_next_free_sgpr 102
  .amdhsa_accum_offset 128
  .amdhsa_group_segment_fixed_size 0
  .amdhsa_kernarg_size 112
  .amdhsa_user_sgpr_count 2
  .amdhsa_user_sgpr_kernarg_segment_ptr 1
  .amdhsa_system_sgpr_workgroup_id_x 1
  .amdhsa_float_denorm_mode_32 3
.end_amdhsa_kernel
""")

if __name__ == "__main__":
    kw = eval("dict(%s)" % (sys.argv[2] if len(sys.argv) > 2 else ""))
    open(sys.argv[1], "w").write(gen(**kw))
```

```python
import re

def regs_of(tok):
    tok = tok.strip()
    tok = re.sub(r"^-|^\||\|$|^abs\(|\)$", "", tok)
    m = re.fullmatch(r"([vsa])(\d+)", tok)
    if m: return {m.group(1) + m.group(2)}
    m = re.fullmatch(r"([vsa])\[(\d+):(\d+)\]", tok)
    if m: return {m.group(1) + str(i) for i in range(int(m.group(2)), int(m.group(3)) + 1)}
    if tok in ("vcc", "vcc_lo", "vcc_hi"): return {"vcc"}
    if tok in ("exec", "exec_lo", "exec_hi"): return {"exec"}
    if tok == "m0": return {"m0"}
    return set()

TRANS = ("v_exp_f32", "v_log_f32", "v_rcp_f32", "v_rsq_f32", "v_sqrt_f32", "v_sin_f32", "v_cos_f32")

class Ins:
    def __init__(self, text):
        self.text = text
        t = text.split(";")[0].strip()
        parts = t.split(None, 1)
        self.op = parts[0]
        rest = parts[1] if len(parts) > 1 else ""
        toks = [x.strip() for x in rest.split(",")] if rest else []
        mods = ""
        if toks:
            last = toks[-1].split(None, 1)
        m = re.search(r"\s(offen|idxen|offset:|offset0:|row_|quad_perm|bank_mask|sc0|sc1|nt\b|lds\b|bound_ctrl|op_sel|glc|wave_|cbsz|abid|blgp|neg_|clamp|off\b)", " " + rest)
        if m:
            cut = m.start()
            mods = (" " + rest)[cut:]
            rest = (" " + rest)[:cut]
        self.mods = mods
        self.ops = [x.strip() for x in rest.split(",") if x.strip()]
        self.w = set(); self.r = set()
        op = self.op
        self.cls = "other"
        self.dpp = ("row_" in mods and ("row_ror" in mods or "row_sh" in mods or "row_bcast" in mods or "row_newbcast" in mods or "row_mirror" in mods or "row_half" in mods)) or "quad_perm" in mods
        R = lambda i: regs_of(self.ops[i]) if i < len(self.ops) else set()
        allr = lambda a: set().union(*[regs_of(x) for x in self.ops[a:]]) if len(self.ops) > a else set()
        if op.startswith("v_mfma"):
            self.cls = "mfma"; self.w = R(0); self.ab = R(1) | R(2); self.c = R(3); self.r = self.ab | self.c
        elif op.startswith("v_permlane") and "swap" in op:
            self.cls = "valu"; self.w = R(0) | R(1); self.r = R(0) | R(1); self.perml = True
        elif op.startswith("v_"):
            self.cls = "valu"
            self.w = R(0); self.r = allr(1)
            if op.startswith(("v_add_co", "v_sub_co", "v_addc_co", "v_subb_co")): self.w |= R(1); self.r = allr(2)
            if op.startswith(("v_fmac", "v_dot2c", "v_pk_fmac")) or self.dpp: self.r |= R(0)
            if op.startswith("v_cndmask") and len(self.ops) == 3: self.r |= {"vcc"}
        elif op.startswith(("buffer_", "global_")):
            self.cls = "vmem"
            if "load" in op and " lds" not in mods:
                self.w = R(0); self.r = allr(1)
            elif "atomic" in op and "sc0" in mods and op.startswith("global_"):
                self.w = R(0); self.r = allr(1)
            else:
                self.r = allr(0)
                if " lds" in mods: self.r |= {"m0"}
            self.wide_store = ("store" in op and ("x3" in op or "x4" in op))
            if self.wide_store: self.data = R(0) if op.startswith("buffer_") else R(1)
        elif op.startswith("ds_"):
            self.cls = "ds"
            if op.startswith(("ds_read", "ds_bpermute", "ds_permute", "ds_swizzle")) or "_rtn" in op:
                self.w = R(0); self.r = allr(1)
            else: self.r = allr(0)
        elif op.startswith("s_"):
            self.cls = "salu"
            if op.startswith(("s_cmp", "s_cbranch", "s_branch", "s_waitcnt", "s_nop", "s_barrier", "s_endpgm", "s_sleep", "s_setprio", "s_bitcmp")):
                self.r = allr(0)
            else:
                self.w = R(0); self.r = allr(1)
        self.states = 1
        if op == "s_nop": self.states = int(self.ops[0], 0) + 1

def need(prod, cons):
    n = 0
    vw = {x for x in prod.w if x[0] in "va" and x not in ("vcc",)}
    sw = {x for x in prod.w if x[0] == "s" or x == "vcc"}
    if prod.cls == "valu":
        if cons.cls == "valu" and cons.dpp and vw & cons.r: n = max(n, 2)
        if cons.cls == "mfma" and vw & cons.r: n = max(n, 2)
        if cons.cls == "valu" and getattr(cons, "perml", False) and vw & cons.r: n = max(n, 2)
        if cons.op.startswith(("v_readlane", "v_readfirstlane")) and vw & cons.r: n = max(n, 1)
        if cons.cls == "valu" and sw & cons.r: n = max(n, 4 if cons.op.startswith(("v_readlane", "v_writelane")) else 2)
        if cons.cls == "vmem" and sw & cons.r: n = max(n, 5)
        if cons.cls == "salu" and sw & cons.r: n = max(n, 1)
        if prod.op.startswith(TRANS) and cons.cls in ("valu", "mfma") and vw & cons.r: n = max(n, 1)
        if "exec" in prod.w and cons.cls in ("valu", "mfma"): n = max(n, 5)
    if prod.cls == "mfma":
        P = 4 if "16x16x32" in prod.op or "16x16x16" in prod.op else 8
        full = {4: 8, 8: 12}[P]
        if cons.cls == "mfma":
            if prod.w & cons.ab: n = max(n, full)
            if prod.w & cons.c and prod.w != cons.c: n = max(n, full - 2)
            if prod.w & cons.w and prod.w != cons.c: n = max(n, full)
        elif cons.cls in ("valu", "vmem", "ds"):
            if prod.w & (cons.r | cons.w): n = max(n, full)
        if cons.cls == "valu" and prod.c & cons.w: n = max(n, {4: 3, 8: 7}[P])
    if prod.cls == "salu" and "m0" in prod.w and cons.cls == "vmem" and "m0" in cons.r: n = max(n, 1)
    if prod.cls == "vmem" and getattr(prod, "wide_store", False):
        if cons.w & prod.data: n = max(n, 2)
    return n

class Asm:
    def __init__(self):
        self.out = []; self.hist = []; self.nlab = 0; self.vm = []; self.pads = 0
    def raw(self, s): self.out.append(s)
    def __call__(self, s):
        for line in s.strip("\n").split("\n"):
            line = line.strip()
            if not line or line.startswith(";"):
                if line: self.out.append("    " + line)
                continue
            if line.endswith(":"):
                self.out.append(line); continue
            ins = Ins(line)
            dist = 0; pad = 0
            for p in reversed(self.hist[-24:]):
                k = need(p, ins) - dist
                if k > pad: pad = k
                dist += p.states
                if dist >= 21: break
            while pad > 0:
                k = min(pad, 16); nop = Ins(f"s_nop {k-1}")
                self.out.append(f"    s_nop {k-1}"); self.hist.append(nop); pad -= k; self.pads += 1
            self.out.append("    " + line); self.hist.append(ins)
    def label(self, p="L"):
        self.nlab += 1; return f"{p}_{self.nlab}"
    def vm_reset(self): self.vm = []
    def vmem(self, s, tag=None):
        self(s); self.vm.append(tag)
    def vm_wait(self, tag):
        idx = max(i for i, t in enumerate(self.vm) if t == tag)
        n = len(self.vm) - 1 - idx
        self(f"s_waitcnt vmcnt({min(n,63)})")
    def vm_pace(self, d):
        import math
        n = self.npace = getattr(self, "npace", 0) + 1
        t = int(math.floor(d*n + 1e-9) - math.floor(d*(n-1) + 1e-9))
        self(f"s_waitcnt vmcnt({t-1})")
    def text(self): return "\n".join(self.out) + "\n"
```

```python
import struct, math, sys
from asm2 import Asm
NAME = "adaLN_cond__sliding_block_cached__glu_gated_glu__decode_kernel"
def f32(x): return "0x%08x" % struct.unpack("<I", struct.pack("<f", x))[0]

MOD_OFF, Q_OFF, SC_OFF, ST_OFF, PA_OFF, PD_OFF, TS_OFF = 0x0, 0x10000, 0x20000, 0xA0000, 0xB0000, 0x120000, 0x200000
DUAL = 0x190000
CERT_OFF, XN_OFF = 0xA8000, 0xA9000
TAG = 's78'
FQ, FP, CRIT, KDONE, RC0, RC1, RC2, TAGC, MS, F0, XC, FC = 0, 4, 8, 12, 16, 20, 24, 28, 32, 48, 52, 56
OACC, GUACC, STL, X1L, XST, QL, MODL, XL, SCL, RED, GU = 0x100, 0x500, 0x80, 0x900, 0x500, 0x1000, 0x1400, 0x2200, 0x2800, 0x4800, 0x8000
KST = 0x16000
LDS_BYTES = 0x26000
W0, W1, W2 = 32, 64, 96
SPIN_MAX = 1 << 20

def gen(dk=3, dv=3, dv3=4, dw=2, diag=False, dry=True, pol="nt", dbg=False, hold=False, probe=False, exp='', pdefer=True, marks=None, dkp=4, pw=3, remap=True, pprobe=False, uplate=True, sprio=1, dlast=3, dwp=2, kslow=False, vslow=False, wpre=True, d0=8, dkh=None, dvhp=None, split=True, yprio=0):
    a = Asm()
    SELLO, SELHI, HIM, CEXP = "s64", "s65", "s66", "s67"
    def vr(b, n=4): return f"v[{b}:{b+n-1}]"
    mode = {'stream': False}
    def stamp(i, force=False):
        if diag and (force or not (marks and mode['stream'])): a(f"s_memrealtime s[{80+2*i}:{81+2*i}]")
    def mark(n):
        if marks and n in marks: stamp(1 + marks.index(n), True)
    def srd(d, p, size):
        a(f"s_mov_b32 s{d}, s{p}\ns_mov_b32 s{d+1}, s{p+1}\ns_mov_b32 s{d+2}, {size}\ns_mov_b32 s{d+3}, 0x20000")
    def lds_spin(off, target, vt="v3", st="s30", nap=True):
        L = a.label("spin"); D = a.label("spind")
        a(f"""{L}:
        ds_read_b32 {vt}, v2 offset:{off}
        s_waitcnt lgkmcnt(0)
        v_readfirstlane_b32 {st}, {vt}
        s_cmp_ge_u32 {st}, {target}
        s_cbranch_scc1 {D}
        {'s_sleep 1' if nap else ''}
        s_branch {L}
        {D}:""")
    def lds_inc(off, vt="v3"):
        a(f"v_mov_b32 {vt}, 1\ns_mov_b64 exec, 1\nds_add_u32 v2, {vt} offset:{off}\ns_mov_b64 exec, -1")
    def unpack2(lo, hi, pk):
        a(f"v_lshlrev_b32 {lo}, 16, {pk}\nv_and_b32 {hi}, {HIM}, {pk}") if lo != pk else a(f"v_and_b32 {hi}, {HIM}, {pk}\nv_lshlrev_b32 {lo}, 16, {pk}")
    def round2(x, y, t):
        a(f"v_cvt_pk_bf16_f32 {t}, {x}, {y}"); unpack2(x, y, t)
    def round1(x):
        a(f"v_cvt_pk_bf16_f32 {x}, {x}, {x}\nv_lshlrev_b32 {x}, 16, {x}")
    def transpose_inplace(Wb, t0="v4", t1="v5"):
        P = lambda i, d: (f"v{Wb+8*i+d}", f"v{Wb+8*i+4+d}")
        for i in range(4):
            e, o = P(i, i)
            a(f"v_perm_b32 {t0}, {o}, {e}, {SELLO}\nv_perm_b32 {o}, {o}, {e}, {SELHI}\nv_mov_b32 {e}, {t0}")
            for d in range(i+1, 4):
                e, o = P(i, d); e2, o2 = P(d, i)
                a(f"""v_perm_b32 {t0}, {o}, {e}, {SELLO}
                v_perm_b32 {t1}, {o}, {e}, {SELHI}
                v_perm_b32 {e}, {o2}, {e2}, {SELLO}
                v_perm_b32 {o}, {o2}, {e2}, {SELHI}
                v_mov_b32 {e2}, {t0}
                v_mov_b32 {o2}, {t1}""")
    def block_voff(v, stride):
        a(f"v_lshrrev_b32 v3, 3, v0\nv_mul_u32_u24 v3, {8*stride}, v3\nv_and_b32 {v}, 7, v0\nv_lshl_add_u32 {v}, {v}, 4, v3")
    def load_block(dst, voff, sr, soff, stride, pace=None, tag=None, fill=None):
        for i in range(8):
            if pace: a.vm_pace(pace)
            a.vmem(f"buffer_load_dwordx4 {vr(dst+4*i)}, {voff}, s[{sr}:{sr+3}], {soff} offen {pol}", tag)
            if i < 7: a(f"s_add_u32 {soff}, {soff}, {stride}")
            if fill and i in fill: fill[i]()
    def dma_block(ldsbase_s, voff, sr, soff, stride, pace=None, tag=None, fill=None):
        for i in range(8):
            a(f"s_add_u32 m0, {ldsbase_s}, {i*1024}")
            if pace: a.vm_pace(pace)
            a.vmem(f"buffer_load_dwordx4 {voff}, s[{sr}:{sr+3}], {soff} offen {pol} lds", tag)
            if i < 7: a(f"s_add_u32 {soff}, {soff}, {stride}")
            if fill and i in fill: fill[i]()
    def poll(loads, regs, vt="v3", cnt="s31"):
        L = a.label("poll"); D = a.label("polld")
        a(f"s_mov_b32 {cnt}, 0\n{L}:")
        for l in loads: a(l)
        a("s_waitcnt vmcnt(0)")
        check(regs, vt)
        a(f"""s_cbranch_vccz {D}
        s_add_u32 {cnt}, {cnt}, 1
        s_cmp_lt_u32 {cnt}, {SPIN_MAX}
        s_cbranch_scc1 {L}
        {D}:""")
        a.vm_reset()
    def poll_dual(loads, pairs, cnt="s31"):
        L = a.label("pollx"); D = a.label("pollxd")
        a(f"s_mov_b32 {cnt}, 0\n{L}:")
        for l in loads: a(l)
        a("s_waitcnt vmcnt(0)")
        for k, (x, y) in enumerate(pairs):
            a(f"v_xor_b32 v{y}, v{x}, v{y}\nv_xor_b32 v{y}, {TAG}, v{y}")
            if k: a(f"v_or_b32 v{pairs[0][1]}, v{pairs[0][1]}, v{y}")
        a(f"""v_cmp_ne_u32 vcc, 0, v{pairs[0][1]}
        s_cbranch_vccz {D}
        s_add_u32 {cnt}, {cnt}, 1
        s_cmp_lt_u32 {cnt}, {SPIN_MAX}
        s_cbranch_scc1 {L}
        {D}:""")
        a.vm_reset()
    def tag_load(v="v5"):
        a(f"s_mov_b32 s30, {XN_OFF}")
        a.vmem(f"buffer_load_dword {v}, v2, s[24:27], s30 offen sc1", "tag")
    def tag_wait(v="v5", wait=True):
        if wait: a.vm_wait("tag")
        a(f"v_readfirstlane_b32 {TAG}, {v}\ns_add_u32 {TAG}, {TAG}, 0x9e3779b9")
    def check(regs, vt):
        r = list(regs)
        if len(r) == 1: a(f"v_cmp_eq_u32 vcc, -1, v{r[0]}"); return
        if len(r) == 2: a(f"v_max_u32 {vt}, v{r[0]}, v{r[1]}"); r = []
        else: a(f"v_max3_u32 {vt}, v{r[0]}, v{r[1]}, v{r[2]}"); r = r[3:]
        while r:
            if len(r) >= 2: a(f"v_max3_u32 {vt}, {vt}, v{r[0]}, v{r[1]}"); r = r[2:]
            else: a(f"v_max_u32 {vt}, {vt}, v{r[0]}"); r = []
        a(f"v_cmp_eq_u32 vcc, -1, {vt}")
    def cnt_poll(off, targets):
        L = a.label("cp"); D = a.label("cpd"); n = len(targets)
        a(f"s_mov_b32 s31, 0\n{L}:")
        if n == 1: a(f"global_load_dword v4, {off}, s[60:61] sc1")
        else: a(f"global_load_dwordx2 v[4:5], {off}, s[60:61] sc1")
        a("s_waitcnt vmcnt(0)")
        a(f"v_cmp_gt_u32 vcc, {targets[0]}, v4")
        if n == 2: a(f"v_cmp_gt_u32 s[32:33], {targets[1]}, v5\ns_or_b64 vcc, vcc, s[32:33]")
        a(f"""s_cbranch_vccz {D}
        s_add_u32 s31, s31, 1
        s_cmp_lt_u32 s31, {SPIN_MAX}
        s_cbranch_scc1 {L}
        {D}:""")
        a.vm_reset()
    def row_reduce(op, v, steps=(1, 2, 4, 8)):
        for n in steps: a(f"{op}_dpp {v}, {v}, {v} row_ror:{n} row_mask:0xf bank_mask:0xf")
    def xrow_reduce(op, v, t):
        a(f"v_mov_b32 {t}, {v}\nv_permlane16_swap_b32 {t}, {v}\n{op} {v}, {v}, {t}\nv_mov_b32 {t}, {v}\nv_permlane32_swap_b32 {t}, {v}\n{op} {v}, {v}, {t}")
    def guard(text):
        if not dry: a(text); return
        L = a.label("g"); a(f"s_cbranch_execz {L}"); a(text); a(f"{L}:")
    def setexec(val):
        lo, hi = val & 0xffffffff, val >> 32
        return f"s_mov_b32 exec_lo, {lo:#x}\ns_mov_b32 exec_hi, {hi:#x}"
    def finish(): a("s_branch L_finish" if diag else "s_endpgm")

    a(f"""
    s_cmp_ge_u32 s2, 256
    s_cbranch_scc1 L_end
    s_load_dwordx16 s[36:51], s[0:1], 0
    s_load_dwordx8 s[52:59], s[0:1], 64
    s_load_dwordx4 s[60:63], s[0:1], 96
    """)
    if diag:
        for i in range(1, 8): a(f"s_mov_b32 s{80+2*i}, 0")
    stamp(0)
    a(f"""
    v_lshrrev_b32 v1, 6, v0
    v_and_b32 v0, 63, v0
    v_mov_b32 v2, 0
    v_readfirstlane_b32 s3, v1
    s_and_b32 s4, s2, 7
    s_bfe_u32 s5, s2, 0x30003
    s_lshr_b32 s6, s2, 6
    s_cmp_eq_u32 s6, 0
    s_cselect_b32 s28, 1, 2
    s_cmp_eq_u32 s6, 1
    s_cselect_b32 s28, 0, s28
    s_cmp_ge_u32 s4, {0 if 'nohp' in exp else 2}
    s_cselect_b32 s28, 0, s28
    s_mov_b32 {SELLO}, 0x05040100
    s_mov_b32 {SELHI}, 0x07060302
    s_mov_b32 {HIM}, 0xffff0000
    s_mov_b32 {CEXP}, {f32(math.log2(math.e)/16)}
    s_cmp_ge_u32 s3, 8
    s_cbranch_scc1 L_notstream
    """)
    def roles():
        a(f"""s_add_u32 s30, s6, {1 if remap else 0}
        s_and_b32 s30, s30, 3
        s_lshl_b32 s7, s4, 2
        s_add_u32 s7, s7, s30
        s_sub_u32 s7, s7, 4
        s_lshl_b32 s30, s4, 1
        s_add_u32 s30, s30, s6
        s_cmp_ge_u32 s4, 2
        s_cselect_b32 s7, s7, s30
        s_sub_u32 s30, s30, 2
        s_lshl_b32 s30, s30, 3
        s_add_u32 s30, s30, s5
        s_lshl_b32 s29, s5, 1
        s_add_u32 s29, s29, s4
        s_cmp_eq_u32 s28, 2
        s_cselect_b32 s29, s30, s29""")
    def late_h():
        a(f"""s_lshl_b32 s30, s4, 3
        s_add_u32 s30, s30, s5
        s_lshl_b32 s31, s6, 8
        s_add_u32 s31, s31, s30
        s_sub_u32 s31, s31, 16
        s_cmp_lt_u32 s31, {0 if 'nohp' in exp else 26}
        s_cselect_b32 s29, s30, s29
        s_cselect_b32 s28, 3, s28""")
    WS = "s[24:27]"
    def ws_srd(): srd(24, 62, hex(0x300000 if diag else 0x200000))

    def g_prep():
        a("v_lshlrev_b32 v3, 4, v0\nv_add_u32 v3, s33, v3")
        for i in range(8): a(f"ds_read_b128 {vr(W1+4*i)}, v3 offset:{i*1024}")
        a(f"""v_lshrrev_b32 v3, 4, v0
        v_and_b32 v4, 1, v0
        v_lshl_add_u32 v3, v3, 1, v4
        v_bfe_u32 v4, v0, 1, 2
        v_lshlrev_b32 v4, 1, v4
        v_lshl_add_u32 v12, v3, 3, v4
        s_lshl_b32 s30, s3, 6
        v_add_u32 v13, s30, v12
        v_lshlrev_b32 v3, 1, v13
        ds_read_b32 v14, v3 offset:{MODL+896}
        ds_read_b32 v16, v3 offset:{MODL+1792}
        v_lshlrev_b32 v13, 2, v13
        v_lshlrev_b32 v12, 3, v12
        v_and_b32 v3, 7, v0
        v_cmp_gt_u32 vcc, 7, v3
        v_cndmask_b32 v18, 0, v3, vcc
        v_mov_b32 v4, {f32(1/7)}
        v_cndmask_b32 v20, 0, v4, vcc
        v_mov_b32 v4, {f32(1/448)}
        v_cndmask_b32 v21, 0, v4, vcc
        v_lshlrev_b32 v19, 8, v18
        v_lshlrev_b32 v18, 3, v18
        v_lshlrev_b32 v3, 5, v3
        v_lshrrev_b32 v4, 5, v0
        v_lshl_add_u32 v3, v4, 4, v3
        v_bfe_u32 v4, v0, 3, 1
        v_lshl_add_u32 v3, v4, 2, v3
        v_lshlrev_b32 v3, 1, v3
        v_add_u32 v22, s32, v3
        s_waitcnt lgkmcnt(0)""")
        unpack2("v14", "v15", "v14"); unpack2("v16", "v17", "v16")
        a("v_add_f32 v16, 1.0, v16\nv_add_f32 v17, 1.0, v17"); round2("v16", "v17", "v3")
        transpose_inplace(W1)
    a("L_stream:")
    mode['stream'] = True
    a(f"""s_lshl_b32 s30, s5, 3
    s_add_u32 s30, s30, s4
    s_lshl_b32 s31, s30, 22
    s_add_u32 s31, s31, 0x300000
    v_and_b32 v3, 7, v0
    v_lshlrev_b32 v1, 10, v3
    v_bfe_u32 v4, v0, 3, 1
    v_lshl_add_u32 v1, v4, 4, v1
    v_lshrrev_b32 v4, 4, v0
    v_lshl_add_u32 v1, v4, 5, v1
    v_lshrrev_b32 v4, 3, v0
    v_lshlrev_b32 v4, 12, v4
    v_lshl_add_u32 v14, v3, 4, v4
    s_lshl_b32 s32, s6, 15
    s_lshr_b32 s33, s3, 1
    s_lshl_b32 s33, s33, 13
    s_add_u32 s34, s32, s33
    s_and_b32 s33, s3, 1
    s_lshl_b32 s33, s33, 9
    s_add_u32 s68, s34, s33
    s_lshl_b32 s32, s6, 7
    s_lshl_b32 s33, s3, 15
    s_add_u32 s35, s32, s33
    s_lshl_b32 s33, s3, 13
    s_add_u32 s33, s33, {KST}
    s_waitcnt lgkmcnt(0)
    s_add_u32 s8, s38, s31
    s_addc_u32 s9, s39, 0
    s_mov_b32 s10, 0x100000
    s_mov_b32 s11, 0x20000
    s_add_u32 s12, s40, s31
    s_addc_u32 s13, s41, 0
    s_mov_b32 s14, 0x100000
    s_mov_b32 s15, 0x20000""")
    a.vm_reset()
    kslot = lambda t: 32 + 16*(t if t < 6 else t - 2)
    nk = [0]
    korder = ([(t, 3) for t in range(8)] + [(t, j) for t in range(8) for j in range(3)]) if kslow else [(t, j) for t in range(8) for j in range(4)]
    def kload(t, j, dk):
        if t >= 6: a(f"s_add_u32 m0, s33, {(t-6)*4096 + j*(1024-128)}")
        dd = max(dk, d0) if (kslow and nk[0] < 8) else dk
        if nk[0] >= int(dd): a.vm_pace(dd)
        if t < 6: a.vmem(f"buffer_load_dwordx4 {vr(kslot(t)+4*j)}, v1, s[8:11], s{68+t} offen offset:{j*128} {pol}", f"k{t}")
        else: a.vmem(f"buffer_load_dwordx4 v1, s[8:11], s{68+t} offen offset:{j*128} {pol} lds", f"k{t}")
        mark(nk[0])
        nk[0] += 1
    def kmm(t):
        if t < 6: a.vm_wait(f"k{t}")
        D = 4 + 4*(t & 1)
        for j in range(4): a(f"v_mfma_f32_16x16x32_bf16 {vr(D)}, {vr(16+4*j)}, {vr(kslot(t)+4*j)}, {vr(D) if j else 0}")
    def kfin(t):
        D = 4 + 4*(t & 1); up = t & 1
        for h in range(2):
            a(f"v_add_f32_dpp v{12+h}, v{D+h+(0 if up else 2)}, v{D+h+(2 if up else 0)} row_ror:8 row_mask:{1<<(t>>1):#x} bank_mask:{0xc if up else 0x3:#x}")
    for t in range(1, 8): a(f"s_add_u32 s{68+t}, s68, {t*4*32768}")
    a("s_cmp_lg_u32 s28, 0\ns_cbranch_scc1 L_st_hp")
    for n, (t, j) in enumerate(korder):
        kload(t, j, dk)
        if n == (7 if kslow else int(dk) - 1): a("s_barrier")
    a("s_branch L_st_kdone\nL_st_hp:\ns_barrier")
    lds_spin(CRIT, 7)
    if dkh is not None and dkh != dkp:
        a("s_cmp_eq_u32 s28, 2\ns_cbranch_scc1 L_st_p")
        a.vm_reset(); nk[0] = 0
        for t, j in korder: kload(t, j, dkh)
        a("s_branch L_st_kdone\nL_st_p:")
    a.vm_reset(); nk[0] = 0
    for t, j in korder: kload(t, j, dkp)
    a("L_st_kdone:")
    if yprio: a("s_cmp_ge_u32 s3, 4\ns_cbranch_scc0 L_st_old\ns_setprio 1\nL_st_old:")
    ws_srd()
    stamp(1)
    lds_spin(FQ, 1)
    stamp(2)
    a(f"""v_and_b32 v3, 1, v0
    v_lshlrev_b32 v3, 9, v3
    v_bfe_u32 v4, v0, 1, 1
    v_lshl_add_u32 v3, v4, 4, v3
    v_lshrrev_b32 v4, 4, v0
    v_lshl_add_u32 v3, v4, 5, v3""")
    for j in range(4): a(f"ds_read_b128 {vr(16+4*j)}, v3 offset:{QL+j*128}")
    a("s_waitcnt lgkmcnt(0)")
    a("s_mov_b32 s72, s35")
    for r in range(1, 4): a(f"s_add_u32 s{72+r}, s35, {r*8*32768}")
    kmm(2); kmm(3); kfin(2)
    vreg = lambda r: {0: 64, 1: 32, 2: 32, 3: 64}[r]
    def vphase(d, slowfirst):
        vm0 = list(a.vm); nv = [0]
        def vload(r, i):
            if r == 2: a(f"s_add_u32 m0, s101, {i*512}")
            a.vm_pace(d if r < 3 else max(d, dlast))
            if r == 2: a.vmem(f"buffer_load_dwordx4 v14, s[12:15], s{72+r} offen offset:{i*512} {pol} lds", f"v{r}")
            else: a.vmem(f"buffer_load_dwordx4 {vr(vreg(r)+4*i)}, v14, s[12:15], s{72+r} offen offset:{i*512} {pol}", f"v{r}")
            mark(32 + nv[0]); nv[0] += 1
        def publish0():
            a(f"""v_cvt_pk_bf16_f32 v96, v12, v13
            s_lshl_b32 s30, s5, 3
            s_add_u32 s30, s30, s4
            s_lshl_b32 s31, s6, 3
            s_add_u32 s31, s31, s3
            v_min_u32 v96, -2, v96
            s_lshl_b32 s32, s30, 13
            s_lshl_b32 s33, s31, 8
            s_add_u32 s32, s32, s33
            s_add_u32 s32, s32, {SC_OFF}
            v_lshlrev_b32 v3, 2, v0""")
            a.vmem(f"buffer_store_dword v96, v3, {WS}, s32 offen sc1")
            unpack2("v12", "v13", "v96")
            a("v_mov_b32 v100, v12\nv_mov_b32 v101, v13\nv_permlane32_swap_b32 v100, v101\nv_max_f32 v100, v100, v101")
            row_reduce("v_max_f32", "v100")
            a(f"""v_mov_b32 v3, v100
            v_permlane16_swap_b32 v3, v100
            v_max_f32 v100, v100, v3
            v_mov_b32 v102, v100
            v_permlane32_swap_b32 v100, v102
            s_lshl_b32 s32, s30, 9
            s_lshl_b32 s33, s31, 4
            s_add_u32 s32, s32, s33
            s_add_u32 s32, s32, {ST_OFF}
            v_sub_f32 v101, v12, v100
            v_sub_f32 v103, v13, v102
            v_mul_f32 v101, {CEXP}, v101
            v_mul_f32 v103, {CEXP}, v103
            v_exp_f32 v101, v101
            v_exp_f32 v103, v103
            v_permlane32_swap_b32 v101, v103
            v_add_f32 v101, v101, v103""")
            row_reduce("v_add_f32", "v101")
            a("""v_mov_b32 v3, v101
            v_permlane16_swap_b32 v3, v101
            v_add_f32 v101, v101, v3
            v_mov_b32 v103, v101
            v_permlane32_swap_b32 v101, v103
            s_mov_b64 exec, 1""")
            a.vmem(f"buffer_store_dwordx4 v[100:103], v2, {WS}, s32 offen sc1")
            a(f"v_mov_b32 v3, 1\nds_add_u32 v2, v3 offset:{KDONE}\ns_mov_b64 exec, -1")
            stamp(3)
        def zero_a():
            for k in range(16, 32): a(f"v_mov_b32 v{k}, 0")
        def softmax():
            lds_spin(FP, 1)
            stamp(4)
            a(f"""v_lshrrev_b32 v3, 4, v0
            v_bfe_u32 v4, v0, 1, 1
            v_lshlrev_b32 v3, 9, v3
            v_lshl_add_u32 v3, v4, 4, v3
            v_bfe_u32 v4, v0, 2, 2
            v_lshl_add_u32 v3, v4, 6, v3
            s_and_b32 s30, s3, 3
            s_lshl_b32 s30, s30, 11
            s_lshr_b32 s31, s3, 2
            s_lshl_b32 s31, s31, 5
            s_add_u32 s30, s30, s31
            v_add_u32 v3, s30, v3
            ds_read_b128 v[108:111], v3 offset:{SCL}
            ds_read_b128 v[112:115], v3 offset:{SCL+256}
            v_and_b32 v4, 1, v0
            v_lshlrev_b32 v5, 3, v4
            ds_read_b64 v[116:117], v5 offset:{MS}
            v_mul_u32_u24 v4, 0x0202, v4
            v_lshlrev_b32 v4, 16, v4
            v_add_u32 v4, 0x05040c0c, v4
            s_waitcnt lgkmcnt(0)""")
            for i in range(8): a(f"v_perm_b32 v{108+i}, v{108+i}, v{108+i}, v4")
            for i in range(8): a(f"v_fma_f32 v{108+i}, v{108+i}, {CEXP}, -v116")
            for i in range(8): a(f"v_exp_f32 v{108+i}, v{108+i}")
            for i in range(8): a(f"v_mul_f32 v{108+i}, v{108+i}, v117")
            for k in range(4): a(f"v_cvt_pk_bf16_f32 v{96+k}, v{108+k}, v{112+k}")
        def amake(r):
            for jj in range(4):
                n = (4*(jj - r)) % 16
                for k in range(4):
                    a(f"v_mov_b32_dpp v{16+4*jj+k}, v{96+k} " + (f"row_ror:{n}" if n else "quad_perm:[0,1,2,3]") + f" row_mask:0xf bank_mask:{1<<jj:#x}")
        def pv(r, js):
            R = vreg(r)
            for j in js:
                T = 108 + 4*(j & 3)
                for i2 in range(4): a(f"v_perm_b32 v{T+i2}, v{R+8*i2+4+(j>>1)}, v{R+8*i2+(j>>1)}, {SELHI if j & 1 else SELLO}")
                D = 100 + 4*(j >> 2)
                a(f"v_mfma_f32_16x16x32_bf16 {vr(D)}, {vr(16+4*(j&3))}, {vr(T)}, {vr(D) if (r or j & 3) else 0}")
        if slowfirst: order = [(r, i) for par in (0, 1) for r in range(3) for i in range(par, 8, 2)]
        else: order = [(r, i) for r in range(3) for i in range(8)]
        assert d <= 8
        todo = [softmax, lambda: (amake(0), a.vm_wait("v0"), pv(0, range(0, 3))), lambda: pv(0, range(3, 8))]
        for n, (r, i) in enumerate(order):
            vload(r, i)
            if n == 0:
                kmm(0); kfin(3); kmm(1); kfin(0)
                a("v_lshlrev_b32 v3, 4, v0\nv_add_u32 v15, s33, v3\ns_mov_b32 s101, s33")
            if n == 1: kmm(4); kfin(1); kmm(5); kfin(4)
            if n == 2:
                kfin(5); a.vm_wait("k7")
                for k in range(8): a(f"ds_read_b128 {vr(96+4*k)}, v15 offset:{k*1024}")
                a("s_waitcnt lgkmcnt(4)"); kmm(6); a("s_waitcnt lgkmcnt(0)"); kmm(7); kfin(6); kfin(7)
                if not split: publish0()
            if n == 3 and split: publish0()
            if n == 5: zero_a()
            if n >= 16 + pw and todo: todo.pop(0)()
        while todo: todo.pop(0)()
        def get2():
            a.vm_wait("v2")
            for k in range(8): a(f"ds_read_b128 {vr(32+4*k)}, v15 offset:{k*1024}")
            amake(2); a("s_waitcnt lgkmcnt(0)")
        todo = [lambda: (amake(1), a.vm_wait("v1"), pv(1, range(0, 4))), lambda: pv(1, range(4, 8)), None, get2, lambda: pv(2, range(0, 4)), lambda: pv(2, range(4, 8))]
        if dlast >= 8:
            for i in range(8): vload(3, i)
            for f in todo:
                if f: f()
        else:
            for i in range(8):
                vload(3, i)
                if todo:
                    f = todo.pop(0)
                    if f: f()
        a.vm = vm0
    a("s_cmp_eq_u32 s6, 3\ns_cbranch_scc1 L_v3")
    if dvhp is not None:
        a("s_cmp_lg_u32 s28, 0\ns_cbranch_scc1 L_vhp")
    vphase(dv, False); a("s_branch L_vlast")
    if dvhp is not None:
        a("L_vhp:"); vphase(dvhp, False); a("s_branch L_vlast")
    a("L_v3:"); vphase(dv3, vslow)
    a("L_vlast:\ns_nop 1")
    roles()
    srd(16, 50, 448*3584); block_voff("v1", 3584)
    a(f"""s_min_u32 s30, s3, 6
    s_mul_i32 s100, s30, {64*3584}
    s_lshl_b32 s30, s7, 7
    s_add_u32 s100, s100, s30
    s_cmp_eq_u32 s3, 7
    s_cselect_b32 s18, 0, s18
    s_cmp_eq_u32 s28, 2
    s_cselect_b32 s18, 0, s18""")
    if not uplate: dma_block("s101", "v1", 16, "s100", 3584)
    for jj in range(4):
        n = (4*(jj - 3)) % 16
        for k in range(4):
            a(f"v_mov_b32_dpp v{16+4*jj+k}, v{96+k} " + (f"row_ror:{n}" if n else "quad_perm:[0,1,2,3]") + f" row_mask:0xf bank_mask:{1<<jj:#x}")
    a(f"""v_and_b32 v3, 7, v0
    v_lshlrev_b32 v3, 5, v3
    v_lshrrev_b32 v4, 4, v0
    v_lshl_add_u32 v3, v4, 2, v3
    v_lshlrev_b32 v3, 1, v3
    s_mov_b32 s30, 0xff00ff00
    s_mov_b32 s31, 0xff00ff00""")
    a("L_st_tail:")
    for i2 in range(4):
        a(f"s_waitcnt vmcnt({(0 if uplate else 8)+6-2*i2})")
        for j in range(8): a(f"v_perm_b32 v{32+4*j+i2}, v{64+8*i2+4+(j>>1)}, v{64+8*i2+(j>>1)}, {SELHI if j & 1 else SELLO}")
    for j in (0, 4, 1, 5, 2, 6, 3, 7):
        D = 100 + 4*(j >> 2)
        a(f"v_mfma_f32_16x16x32_bf16 {vr(D)}, {vr(16+4*(j&3))}, {vr(32+4*j)}, {vr(D)}")
    for jh in range(2):
        for h in range(2): a(f"v_cndmask_b32 v{108+2*jh+h}, v{100+4*jh+h}, v{100+4*jh+2+h}, s[30:31]")
    for jh in range(2):
        for h in range(2): a(f"v_cvt_f64_f32 v[{112+4*jh+2*h}:{113+4*jh+2*h}], v{108+2*jh+h}\nds_add_f64 v3, v[{112+4*jh+2*h}:{113+4*jh+2*h}] offset:{OACC+h*512+jh*32}")
    a("s_waitcnt lgkmcnt(0)")
    stamp(5)
    mark(64)
    if uplate:
        Lu = a.label("upl")
        if dry: a(f"s_cbranch_execz {Lu}")
        dma_block("s101", "v1", 16, "s100", 3584)
        a(f"{Lu}:")
    guard("s_barrier")
    Ls = a.label("up")
    if dry: a(f"s_cbranch_execz {Ls}")
    a(f"s_cmp_eq_u32 s28, 2\ns_cbranch_scc1 L_st_end\ns_cmp_eq_u32 s3, 7\ns_cbranch_scc1 L_st_end\n{Ls}:")
    a(f"s_lshl_b32 s33, s3, 13\ns_add_u32 s33, s33, {KST}\ns_mov_b32 s32, {GUACC+512}\ns_waitcnt vmcnt(0)")
    g_prep()
    if dry: a("s_cbranch_execz L_svc_tail")
    a("s_setprio 3")
    a("s_branch L_gstage\nL_st_end:"); finish()

    a("L_notstream:")
    mode['stream'] = False
    roles(); late_h()
    a("s_cmp_eq_u32 s3, 15\ns_cbranch_scc1 L_comm\ns_sub_u32 s3, s3, 8\ns_barrier\ns_waitcnt lgkmcnt(0)")
    ws_srd()
    a(f"""
    v_lshrrev_b32 v3, 4, v0
    v_lshlrev_b32 v3, 1, v3
    v_and_b32 v4, 1, v0
    v_add_u32 v3, v3, v4
    v_lshlrev_b32 v6, 4, v3
    s_lshl_b32 s30, s3, 7
    v_add_u32 v6, s30, v6
    v_bfe_u32 v7, v0, 1, 3
    v_lshlrev_b32 v31, 4, v0
    s_cmp_eq_u32 s28, 0
    s_cbranch_scc1 L_svc_w
    """)
    a('s_setprio 2'); tag_load(); srd(68, 56, 448*5376); srd(8, 54, 7168)
    a("s_cmp_eq_u32 s28, 2\ns_cbranch_scc1 L_svc_P")

    def gemv8_finish(Wb, red, cnt):
        for j in range(8): a(f"v_mfma_f32_16x16x32_bf16 {vr(Wb+4*j)}, v[12:15], {vr(Wb+4*j)}, 0")
        for j in range(8):
            D = Wb + 4*j
            a(f"v_add_f32_dpp v{16+j}, v{D+1}, v{D} row_ror:8 row_mask:0xf bank_mask:0x3")
            a(f"v_add_f32_dpp v{16+j}, v{D+2}, v{D+3} row_ror:8 row_mask:0xf bank_mask:0xc")
        a(f"""s_lshl_b32 s30, s3, 11
        v_add_u32 v3, s30, v31
        ds_write_b128 v3, v[16:19] offset:{red}
        ds_write_b128 v3, v[20:23] offset:{red+1024}
        s_waitcnt lgkmcnt(0)""")
        lds_inc(cnt)
    def reduce_publish(red, cnt, rowstride, soff_code):
        lds_spin(cnt, 7, nap=False); stamp(7)
        for rnd, ws_ in enumerate([range(0, 4), range(4, 7)]):
            for k, w in enumerate(ws_):
                a(f"ds_read_b128 {vr(W2+8*k)}, v31 offset:{red+w*2048}\nds_read_b128 {vr(W2+8*k+4)}, v31 offset:{red+w*2048+1024}")
            a("s_waitcnt lgkmcnt(0)")
            for k, w in enumerate(ws_):
                for j in range(8):
                    if w == 0: a(f"v_mov_b32 v{16+j}, v{W2+j}")
                    else: a(f"v_add_f32 v{16+j}, v{16+j}, v{W2+8*k+j}")
        for d in range(4): a(f"v_cvt_pk_bf16_f32 v{24+d}, v{16+2*d}, v{17+2*d}")
        for d in range(4): a(f"v_xor_b32 v{16+d}, {TAG}, v{24+d}")
        a(f"v_lshrrev_b32 v3, 3, v0\nv_mul_u32_u24 v3, {rowstride}, v3\nv_and_b32 v4, 7, v0\nv_lshl_add_u32 v3, v4, 4, v3")
        a(soff_code)
        a.vmem(f"buffer_store_dwordx4 v[24:27], v3, {WS}, s33 offen sc1")
        a(f"s_add_u32 s33, s33, {DUAL}")
        a.vmem(f"buffer_store_dwordx4 v[16:19], v3, {WS}, s33 offen sc1")
    def mod_issue(blk_code, creg=8):
        block_voff("v1", 5376)
        a(f"s_mul_i32 s34, s3, {64*5376}")
        a(blk_code)
        a("s_lshl_b32 s30, s35, 7\ns_add_u32 s34, s34, s30")
        a("v_mul_u32_u24 v3, 896, v7\nv_add_u32 v3, v3, v6")
        a.vmem(f"buffer_load_dwordx4 {vr(creg)}, v3, s[8:11], 0 offen", "c")
        load_block(W2, "v1", 68, "s34", 5376, tag="wm")
    def mod_compute(red, cnt, creg=8, skip=None):
        a.vm_wait("c")
        for d in range(4): unpack2(f"v{16+2*d}", f"v{17+2*d}", f"v{creg+d}")
        T = lambda i: 24+i if i < 4 else creg+i-4
        for i in range(8): a(f"v_mul_f32 v{T(i)}, {f32(-math.log2(math.e))}, v{16+i}")
        for i in range(8): a(f"v_exp_f32 v{T(i)}, v{T(i)}")
        for i in range(8): a(f"v_add_f32 v{T(i)}, 1.0, v{T(i)}")
        for i in range(8): a(f"v_rcp_f32 v{T(i)}, v{T(i)}")
        for i in range(8): a(f"v_mul_f32 v{16+i}, v{16+i}, v{T(i)}")
        for d in range(4): a(f"v_cvt_pk_bf16_f32 v{12+d}, v{16+2*d}, v{17+2*d}")
        a.vm_wait("wm")
        transpose_inplace(W2)
        gemv8_finish(W2, red, cnt)
        L = a.label("nored")
        a(f"s_cmp_lg_u32 s3, 0\ns_cbranch_scc1 {L}")
        if skip: a(f"{skip}\ns_cbranch_scc1 {L}")
        reduce_publish(red, cnt, 5376, f"s_lshl_b32 s33, s35, 7\ns_add_u32 s33, s33, {MOD_OFF}")
        a(f"{L}:")

    a.vm = ["tag"]
    mod_issue("s_mov_b32 s35, s29")
    lds_inc(CRIT); tag_wait(); lds_inc(TAGC)
    mod_compute(RED, RC0)
    stamp(1)
    a("s_branch L_svc_w")

    a("L_svc_P:")
    a.vm = ["tag"]
    srd(72, 42, 448*8192); srd(96, 36, 7168)
    a("v_mul_u32_u24 v3, 896, v7\nv_add_u32 v3, v3, v6")
    a.vmem("buffer_load_dwordx4 v[8:11], v3, s[96:99], 0 offen", "x")
    block_voff("v1", 8192)
    a(f"s_mul_i32 s34, s3, {64*8192}\ns_lshl_b32 s30, s29, 8\ns_add_u32 s34, s34, s30\ns_add_u32 s35, s34, 128")
    load_block(W0, "v1", 72, "s34", 8192, tag="q0")
    load_block(W1, "v1", 72, "s35", 8192, tag="q1")
    if not hold: lds_inc(CRIT)
    tag_wait(); lds_inc(TAGC)
    a.vm_wait("x")
    def red8(v):
        a(f"v_add_f32_dpp {v}, {v}, {v} quad_perm:[1,0,3,2] row_mask:0xf bank_mask:0xf")
        xrow_reduce("v_add_f32", v, "v3")
    for d in range(4): unpack2(f"v{16+2*d}", f"v{17+2*d}", f"v{8+d}")
    a("v_add_f32 v24, v16, v17")
    for i in range(2, 8): a(f"v_add_f32 v24, v24, v{16+i}")
    red8("v24")
    a(f"v_mul_f32 v24, {f32(1/64)}, v24\nv_mov_b32 v25, 0")
    for i in range(8): a(f"v_sub_f32 v3, v{16+i}, v24\nv_fmac_f32 v25, v3, v3")
    red8("v25")
    a(f"""s_lshl_b32 s30, s3, 3
    v_lshlrev_b32 v26, 6, v7
    v_add_u32 v3, s30, v26
    ds_write_b64 v3, v[24:25] offset:{XST}
    v_lshrrev_b32 v3, 4, v0
    v_and_b32 v4, 1, v0
    v_lshl_add_u32 v27, v3, 1, v4
    v_lshl_add_u32 v26, v27, 3, v26
    v_cmp_gt_u32 vcc, 7, v27
    v_mov_b32 v4, {f32(64.0)}
    v_cndmask_b32 v27, 0, v4, vcc
    s_waitcnt lgkmcnt(0)""")
    lds_inc(XC); lds_spin(XC, 7, nap=False)
    a(f"ds_read_b64 v[28:29], v26 offset:{XST}\ns_waitcnt lgkmcnt(0)\nv_mov_b32 v24, v28")
    red8("v24")
    a(f"v_mul_f32 v24, {f32(1/7)}, v24\nv_sub_f32 v28, v28, v24\nv_mul_f32 v28, v28, v28\nv_fma_f32 v25, v28, v27, v29")
    red8("v25")
    a(f"v_mul_f32 v25, {f32(1/448)}, v25")
    round2("v24", "v25", "v3")
    a(f"v_add_f32 v25, {f32(1e-5)}, v25"); round1("v25")
    a("v_sqrt_f32 v25, v25"); round1("v25")
    a("v_rcp_f32 v25, v25")
    for i in range(8): a(f"v_sub_f32 v{16+i}, v{16+i}, v24")
    for d in range(4): round2(f"v{16+2*d}", f"v{17+2*d}", "v3")
    for i in range(8): a(f"v_mul_f32 v{16+i}, v{16+i}, v25")
    for d in range(4): a(f"v_cvt_pk_bf16_f32 v{8+d}, v{16+2*d}, v{17+2*d}")
    a.vm_wait("q0"); transpose_inplace(W0)
    a.vm_wait("q1"); transpose_inplace(W1)
    stamp(5)
    if pprobe: lds_spin(F0, 1, nap=False)
    a(f"v_mul_u32_u24 v30, 5376, v7\nv_add_u32 v30, v30, v6\ns_mov_b32 s32, {DUAL}")
    poll_dual([f"buffer_load_dwordx4 v[16:19], v30, {WS}, 0 offen offset:{MOD_OFF} sc1",
               f"buffer_load_dwordx4 v[20:23], v30, {WS}, 0 offen offset:{MOD_OFF+896} sc1",
               f"buffer_load_dwordx4 {vr(W2)}, v30, {WS}, s32 offen offset:{MOD_OFF} sc1",
               f"buffer_load_dwordx4 {vr(W2+4)}, v30, {WS}, s32 offen offset:{MOD_OFF+896} sc1"],
              [(16+k, W2+k) for k in range(8)])
    if hold: lds_inc(CRIT)
    stamp(1)
    for d in range(4):
        unpack2("v28", "v29", f"v{20+d}")
        a("v_add_f32 v28, 1.0, v28\nv_add_f32 v29, 1.0, v29"); round2("v28", "v29", "v3")
        unpack2("v24", "v25", f"v{8+d}")
        a("v_mul_f32 v24, v24, v28\nv_mul_f32 v25, v25, v29"); round2("v24", "v25", "v3")
        unpack2("v28", "v29", f"v{16+d}")
        a(f"v_add_f32 v24, v24, v28\nv_add_f32 v25, v25, v29\nv_cvt_pk_bf16_f32 v{12+d}, v24, v25")
    gemv8_finish(W0, GU, RC1)
    gemv8_finish(W1, GU + 14336, RC2)
    a("s_cmp_lg_u32 s3, 0\ns_cbranch_scc1 L_pq1")
    reduce_publish(GU, RC1, 8192, f"s_lshl_b32 s33, s29, 8\ns_add_u32 s33, s33, {Q_OFF}")
    a("L_pq1:\ns_cmp_lg_u32 s3, 1\ns_cbranch_scc1 L_pq2")
    reduce_publish(GU + 14336, RC2, 8192, f"s_lshl_b32 s33, s29, 8\ns_add_u32 s33, s33, {Q_OFF+128}")
    a("L_pq2:")
    stamp(2)

    a(f"L_svc_w:\ns_setprio {sprio}\ns_waitcnt vmcnt(0)")
    a.vm_reset()
    srd(8, 44, 4096*896); srd(12, 52, 1792*896); srd(16, 48, 448*3584)
    if 'contig' in exp: block_voff("v1", 128); block_voff("v8", 128)
    else: block_voff("v1", 896); block_voff("v8", 3584)
    S896, S3584 = (128, 128) if 'contig' in exp else (896, 3584)
    if 'now' in exp: a("s_branch L_svc_rdy")
    if wpre: lds_spin(FC, 1)
    if pdefer:
        a("s_cmp_eq_u32 s28, 2\ns_cbranch_scc0 L_svc_nodefer")
        lds_spin(KDONE, 8)
        a("L_svc_nodefer:")
    a(f"""s_lshl_b32 s30, s4, 9
    s_lshl_b32 s31, s6, 6
    s_add_u32 s30, s30, s31
    s_mul_i32 s34, s30, 896
    s_lshl_b32 s31, s3, 7
    s_add_u32 s34, s34, s31
    s_add_u32 s35, s34, {256*896}
    s_mul_i32 s100, s7, {64*896}
    s_add_u32 s100, s100, s31""")
    if 'contig' in exp: a("s_lshl_b32 s30, s4, 2\ns_add_u32 s30, s30, s6\ns_mul_i32 s34, s30, 114688\ns_lshl_b32 s30, s3, 14\ns_add_u32 s34, s34, s30\ns_add_u32 s35, s34, 8192\ns_mul_i32 s100, s7, 57344\ns_lshl_b32 s30, s3, 13\ns_add_u32 s100, s100, s30")
    a("s_cmp_eq_u32 s28, 2\ns_cbranch_scc0 L_svc_mlp")
    load_block(W0, "v1", 8, "s34", S896, pace=dwp, tag="wo0")
    load_block(W1, "v1", 8, "s35", S896, pace=dwp, tag="wo1", fill={min(int(dwp+0.99), 7): lambda: (a.vm_wait("wo0"), transpose_inplace(W0))})
    a.vm_wait("wo1"); transpose_inplace(W1)
    a("s_branch L_svc_rdy\nL_svc_mlp:")
    a.vm_reset()
    load_block(W0, "v1", 8, "s34", S896, pace=dw, tag="wo0")
    load_block(W1, "v1", 8, "s35", S896, pace=dw, tag="wo1", fill={int(dw+0.99): lambda: (a.vm_wait("wo0"), transpose_inplace(W0))})
    load_block(W2, "v1", 12, "s100", S896, pace=dw, tag="wd", fill={int(dw+0.99): lambda: (a.vm_wait("wo1"), transpose_inplace(W1))})
    a(f"""s_mul_i32 s100, s3, {64*3584}
    s_lshl_b32 s30, s7, 7
    s_add_u32 s100, s100, s30
    s_mov_b32 s101, s100
    s_lshl_b32 s33, s3, 13
    s_add_u32 s33, s33, {GU}""")
    if 'contig' in exp: a("s_mul_i32 s100, s7, 57344\ns_lshl_b32 s30, s3, 13\ns_add_u32 s100, s100, s30\ns_mov_b32 s101, s100")
    dma_block("s33", "v8", 16, "s100", S3584, pace=dw, fill={int(dw+0.99): lambda: (a.vm_wait("wd"), transpose_inplace(W2))})
    a("s_waitcnt vmcnt(0)\nL_svc_rdy:")
    a(f"""v_lshrrev_b32 v3, 4, v0
    v_and_b32 v4, 1, v0
    v_lshl_add_u32 v4, v3, 1, v4
    v_bfe_u32 v5, v0, 1, 2
    v_lshlrev_b32 v5, 4, v5
    v_lshl_add_u32 v9, v4, 6, v5
    v_and_b32 v5, 7, v0
    v_lshlrev_b32 v5, 5, v5
    v_lshrrev_b32 v11, 5, v0
    v_lshl_add_u32 v11, v11, 4, v5
    s_lshl_b32 s30, s5, 5
    s_lshl_b32 s31, s4, 2
    s_add_u32 s31, s31, s6
    s_add_u32 s31, s31, s30
    s_mul_i32 s34, s31, 1792
    s_lshl_b32 s33, s3, 8
    s_add_u32 s34, s34, s33
    s_add_u32 s34, s34, {PA_OFF}
    s_mul_i32 s35, s30, 1792
    s_add_u32 s35, s35, s33
    s_add_u32 s35, s35, {PA_OFF}
    s_mul_i32 s100, s5, 28
    s_add_u32 s100, s100, s7
    s_mul_i32 s100, s100, 1792
    s_add_u32 s100, s100, s33
    s_add_u32 s100, s100, {PD_OFF}
    v_mul_u32_u24 v1, 1792, v3
    v_and_b32 v4, 15, v0
    v_lshl_add_u32 v1, v4, 4, v1
    v_lshl_add_u32 v8, v4, 2, v3
    s_lshl_b32 s30, s3, 6
    v_add_u32 v8, s30, v8""")
    for r in range(1, 8): a(f"s_add_u32 s{68+r}, s35, {r*4*1792}")
    a("s_mov_b32 s68, s35")
    stamp(3)
    a("s_setprio 3\nL_svc_tail:")
    guard("s_barrier")
    a(f"""ds_read_b128 v[20:23], v9 offset:{OACC}
    ds_read_b128 v[24:27], v9 offset:{OACC+512}
    s_waitcnt lgkmcnt(1)
    v_cvt_f32_f64 v20, v[20:21]
    v_cvt_f32_f64 v22, v[22:23]
    s_waitcnt lgkmcnt(0)
    v_cvt_f32_f64 v24, v[24:25]
    v_cvt_pk_bf16_f32 v12, v20, v22
    v_cvt_f32_f64 v26, v[26:27]
    v_cvt_pk_bf16_f32 v16, v24, v26""")
    for A0 in (12, 16):
        for d in range(1, 4): a(f"v_mov_b32_dpp v{A0+d}, v{A0} row_ror:{16-2*d} row_mask:0xf bank_mask:0xf")
    for j in range(8): a(f"v_mfma_f32_16x16x32_bf16 {vr(W0+4*j)}, v[12:15], {vr(W0+4*j)}, 0")
    for j in range(8): a(f"v_mfma_f32_16x16x32_bf16 {vr(W0+4*j)}, v[16:19], {vr(W1+4*j)}, {vr(W0+4*j)}")
    for j in range(8): a(f"v_add_f32_dpp v{20+(j&3)}, v{W0+4*j+1}, v{W0+4*j} row_ror:8 row_mask:{1<<(2*(j>>2)):#x} bank_mask:0x3")
    guard(setexec(0x000000FF000000FF) + f"\nbuffer_store_dwordx4 v[20:23], v11, {WS}, s34 offen sc1\ns_mov_b64 exec, -1")
    stamp(4)
    Lp = a.label("notP")
    if dry: a(f"s_cbranch_execz {Lp}")
    a(f"s_cmp_lg_u32 s28, 2\ns_cbranch_scc1 {Lp}"); finish(); a(f"{Lp}:")
    gl = "\n".join(f"buffer_load_dwordx4 {vr(W0+4*r)}, v1, {WS}, s{68+r} offen sc1" for r in range(8))
    guard(gl)
    a(f"s_lshl_b32 s33, s3, 13\ns_add_u32 s33, s33, {GU}\ns_mov_b32 s32, {GUACC}")
    g_prep()
    a(f"""v_lshlrev_b32 v3, 1, v8
    ds_read_u16 v23, v3 offset:{MODL}
    ds_read_u16 v24, v3 offset:{XL}
    v_lshlrev_b32 v25, 2, v8
    v_lshrrev_b32 v26, 5, v0
    v_lshlrev_b32 v26, 2, v26
    s_lshl_b32 s30, s3, 3
    v_add_u32 v26, s30, v26
    s_waitcnt lgkmcnt(0)
    v_lshlrev_b32 v23, 16, v23
    v_lshlrev_b32 v24, 16, v24
    s_mov_b32 s31, 0""")
    L = a.label("pa"); D = a.label("pad")
    a(f"{L}:\ns_waitcnt vmcnt(0)")
    check(range(W0, W0+32), "v3")
    a(f"s_cbranch_vccz {D}\ns_add_u32 s31, s31, 1\ns_cmp_ge_u32 s31, {SPIN_MAX}\ns_cbranch_scc1 {D}")
    a(gl); a(f"s_branch {L}\n{D}:")
    stamp(5)
    for st in (16, 8, 4):
        for k in range(0, st, 2): a(f"v_pk_add_f32 v[{W0+k}:{W0+k+1}], v[{W0+k}:{W0+k+1}], v[{W0+st+k}:{W0+st+k+1}]")
    a(f"""v_permlane32_swap_b32 v{W0}, v{W0+2}
    v_permlane32_swap_b32 v{W0+1}, v{W0+3}
    v_add_f32 v{W0}, v{W0}, v{W0+2}
    v_add_f32 v{W0+1}, v{W0+1}, v{W0+3}
    v_permlane16_swap_b32 v{W0}, v{W0+1}
    v_add_f32 v27, v{W0}, v{W0+1}""")
    round1("v27"); a("v_mul_f32 v27, v27, v23"); round1("v27"); a("v_add_f32 v27, v27, v24"); round1("v27")
    a(f"""ds_write_b32 v25, v27 offset:{X1L}
    v_readfirstlane_b32 s30, v27
    v_subrev_f32 v28, s30, v27
    v_mul_f32 v29, v28, v28
    v_permlane32_swap_b32 v28, v29
    v_add_f32 v28, v28, v29""")
    row_reduce("v_add_f32", "v28")
    a("v_mov_b32 v29, v28\nv_permlane16_swap_b32 v28, v29\nv_add_f32 v28, v28, v29")
    a(f"ds_write_b32 v26, v28 offset:{STL}\ns_waitcnt lgkmcnt(0)")
    a("L_gstage:")
    guard("s_barrier")
    stamp(7)
    a(f"""ds_read_b64 v[24:25], v18 offset:{STL}
    ds_read_b32 v26, v19 offset:{X1L}
    ds_read_b64 v[28:29], v13 offset:{X1L}
    s_waitcnt lgkmcnt(1)
    v_mul_f32 v3, {f32(1/64)}, v24
    v_add_f32 v26, v26, v3
    v_fma_f32 v25, -v3, v24, v25
    v_mul_f32 v27, v26, v20""")
    row_reduce("v_add_f32", "v27", (1, 2, 4))
    a(f"v_sub_f32 v26, v26, v27\nv_mul_f32 v26, v26, v26\nv_fmac_f32 v25, {f32(64.0)}, v26\nv_mul_f32 v25, v25, v21")
    row_reduce("v_add_f32", "v25", (1, 2, 4))
    round2("v27", "v25", "v3")
    a(f"v_add_f32 v25, {f32(1e-5)}, v25\ns_waitcnt lgkmcnt(0)\nv_sub_f32 v28, v28, v27\nv_cvt_pk_bf16_f32 v25, v25, v25\nv_sub_f32 v29, v29, v27\nv_lshlrev_b32 v25, 16, v25")
    a("v_sqrt_f32 v25, v25"); round2("v28", "v29", "v3"); round1("v25")
    a("v_rcp_f32 v25, v25\nv_mul_f32 v28, v28, v25\nv_mul_f32 v29, v29, v25"); round2("v28", "v29", "v3")
    a("v_mul_f32 v28, v28, v16\nv_mul_f32 v29, v29, v17"); round2("v28", "v29", "v3")
    a("v_add_f32 v28, v28, v14\nv_add_f32 v29, v29, v15\nv_cvt_pk_bf16_f32 v24, v28, v29")
    for d in range(1, 4): a(f"v_mov_b32_dpp v{24+d}, v24 row_ror:{16-2*d} row_mask:0xf bank_mask:0xf")
    for j in range(8): a(f"v_mfma_f32_16x16x32_bf16 {vr(W1+4*j)}, v[24:27], {vr(W1+4*j)}, 0")
    for j in range(8):
        Dj = W1 + 4*j; up = j & 1
        a(f"v_add_f32_dpp v{28+((j>>1)&1)}, v{Dj+1-up}, v{Dj+up} row_ror:8 row_mask:{1<<(2*(j>>2)):#x} bank_mask:{0xc if up else 0x3:#x}")
    a("v_cvt_f64_f32 v[24:25], v28\nv_cvt_f64_f32 v[26:27], v29")
    guard(setexec(0x0000FFFF0000FFFF) + "\nds_add_f64 v22, v[24:25]\nds_add_f64 v22, v[26:27] offset:16\ns_mov_b64 exec, -1\ns_waitcnt lgkmcnt(0)\ns_barrier")
    Lq = a.label("isgate")
    if dry: a(f"s_cbranch_execz {Lq}")
    a(f"s_cmp_eq_u32 s32, {GUACC}\ns_cbranch_scc1 {Lq}"); finish(); a(f"{Lq}:")
    a(f"ds_read_b128 v[24:27], v12 offset:{GUACC}\nds_read_b128 v[28:31], v12 offset:{GUACC+512}\ns_waitcnt lgkmcnt(1)")
    a("v_cvt_f32_f64 v24, v[24:25]\nv_cvt_f32_f64 v25, v[26:27]")
    round2("v24", "v25", "v3")
    a(f"v_mul_f32 v24, {f32(-math.log2(math.e))}, v24\nv_mul_f32 v25, {f32(-math.log2(math.e))}, v25\nv_exp_f32 v24, v24\nv_exp_f32 v25, v25\ns_waitcnt lgkmcnt(0)")
    a("v_cvt_f32_f64 v28, v[28:29]\nv_cvt_f32_f64 v29, v[30:31]")
    a("v_cvt_pk_bf16_f32 v3, v28, v29\nv_add_f32 v24, 1.0, v24\nv_add_f32 v25, 1.0, v25\nv_rcp_f32 v24, v24\nv_rcp_f32 v25, v25")
    unpack2("v28", "v29", "v3"); round2("v24", "v25", "v3")
    a("v_mul_f32 v24, v24, v28\nv_mul_f32 v25, v25, v29\nv_cvt_pk_bf16_f32 v24, v24, v25")
    for d in range(1, 4): a(f"v_mov_b32_dpp v{24+d}, v24 row_ror:{16-2*d} row_mask:0xf bank_mask:0xf")
    for j in range(8): a(f"v_mfma_f32_16x16x32_bf16 {vr(W2+4*j)}, v[24:27], {vr(W2+4*j)}, 0")
    for j in range(8): a(f"v_add_f32_dpp v{28+(j&3)}, v{W2+4*j+1}, v{W2+4*j} row_ror:8 row_mask:{1<<(2*(j>>2)):#x} bank_mask:0x3")
    guard(setexec(0x000000FF000000FF) + f"\nbuffer_store_dwordx4 v[28:31], v11, {WS}, s100 offen sc1\ns_mov_b64 exec, -1")
    stamp(6)
    if dry: a("s_cbranch_execz L_dry2")
    finish()

    mode['stream'] = False
    a(f"""L_comm:
    v_mov_b32 v4, 0
    v_mov_b32 v5, 0
    v_mov_b32 v6, 0
    v_mov_b32 v7, 0
    v_lshlrev_b32 v1, 4, v0
    ds_write_b128 v1, v[4:7]
    ds_write_b128 v1, v[4:7] offset:1024
    ds_write_b128 v1, v[4:7] offset:2048
    s_setprio 3
    s_waitcnt lgkmcnt(0)
    s_barrier""")
    ws_srd(); tag_load('v12')
    if wpre:
        srd(8, 44, 4096*896); srd(12, 52, 1792*896); srd(16, 48, 448*3584); srd(20, 50, 448*3584)
        a(f"""v_lshlrev_b32 v3, 7, v0
        s_lshl_b32 s30, s4, 9
        s_lshl_b32 s31, s6, 6
        s_add_u32 s30, s30, s31
        s_lshl_b32 s31, s5, 3
        s_add_u32 s30, s30, s31
        s_mul_i32 s30, s30, 896
        s_add_u32 s32, s30, {256*896}
        s_mov_b32 exec_hi, 0xffffff
        buffer_load_dword v20, v3, s[8:11], s30 offen
        buffer_load_dword v21, v3, s[8:11], s32 offen
        s_cmp_eq_u32 s28, 2
        s_cbranch_scc1 L_c_nopre
        s_lshl_b32 s30, s7, 6
        s_add_u32 s30, s30, s31
        s_mul_i32 s30, s30, 896
        buffer_load_dword v22, v3, s[12:15], s30 offen
        v_mul_u32_u24 v3, 3584, v0
        s_mul_i32 s30, s5, {56*3584}
        s_lshl_b32 s31, s7, 7
        s_add_u32 s30, s30, s31
        buffer_load_dword v23, v3, s[16:19], s30 offen
        buffer_load_dword v24, v3, s[20:23], s30 offen
        L_c_nopre:
        s_mov_b64 exec, -1""")
    a(f"""v_mov_b32 v4, -1
    v_mov_b32 v5, -1
    v_mov_b32 v6, -1
    v_mov_b32 v7, -1
    s_lshl_b32 s34, s5, 3
    s_add_u32 s34, s34, s4
    s_lshl_b32 s30, s34, 13
    s_lshl_b32 s31, s6, 11
    s_add_u32 s30, s30, s31
    s_add_u32 s30, s30, {SC_OFF}
    buffer_store_dwordx4 v[4:7], v1, {WS}, s30 offen sc1
    buffer_store_dwordx4 v[4:7], v1, {WS}, s30 offen offset:1024 sc1
    s_lshl_b32 s30, s5, 5
    s_lshl_b32 s31, s4, 2
    s_add_u32 s30, s30, s31
    s_add_u32 s30, s30, s6
    s_mul_i32 s30, s30, 1792
    s_add_u32 s30, s30, {PA_OFF}
    s_mul_i32 s31, s5, 28
    s_add_u32 s31, s31, s7
    s_mul_i32 s31, s31, 1792
    s_add_u32 s31, s31, {PD_OFF}
    s_cmp_eq_u32 s28, 2
    s_cselect_b32 s31, s30, s31
    buffer_store_dwordx4 v[4:7], v1, {WS}, s30 offen sc1
    buffer_store_dwordx4 v[4:7], v1, {WS}, s31 offen sc1
    s_mov_b32 exec_hi, 0xffff
    buffer_store_dwordx4 v[4:7], v1, {WS}, s30 offen offset:1024 sc1
    buffer_store_dwordx4 v[4:7], v1, {WS}, s31 offen offset:1024 sc1
    s_lshl_b32 s30, s34, 9
    s_lshl_b32 s31, s6, 7
    s_add_u32 s30, s30, s31
    s_add_u32 s30, s30, {ST_OFF}
    s_mov_b64 exec, 0xff
    buffer_store_dwordx4 v[4:7], v1, {WS}, s30 offen sc1
    s_mov_b64 exec, 1
    s_lshl_b32 s30, s5, 5
    s_lshl_b32 s31, s4, 2
    s_add_u32 s30, s30, s31
    s_add_u32 s30, s30, s6
    s_lshl_b32 s30, s30, 2
    s_add_u32 s30, s30, {CERT_OFF}""")
    a("s_cmp_eq_u32 s28, 0\ns_cbranch_scc1 L_c_cert")
    lds_spin(TAGC, 7, st="s31")
    a("L_c_cert:\ns_waitcnt vmcnt(0)")
    tag_wait("v12", wait=False)
    a(f"""v_mov_b32 v3, 1
    ds_write_b32 v2, v3 offset:{FC}
    v_mov_b32 v3, {TAG}
    buffer_store_dword v3, v2, {WS}, s30 offen sc1
    s_mov_b64 exec, -1""")
    stamp(1)
    if 'nocomm' in exp: a(f"v_mov_b32 v3, 1\nds_write_b32 v2, v3 offset:{FQ}\nds_write_b32 v2, v3 offset:{FP}\ns_branch L_c_skip")
    if pprobe:
        a(f"s_cmp_eq_u32 s28, 2\ns_cbranch_scc0 L_c_noP\nv_lshlrev_b32 v8, 7, v0\ns_mov_b32 s30, {MOD_OFF+7*5376}\ns_mov_b32 s32, {MOD_OFF+7*5376+DUAL}\ns_mov_b64 exec, 0x3fff")
        poll_dual([f"buffer_load_dword v12, v8, {WS}, s30 offen sc1", f"buffer_load_dword v16, v8, {WS}, s32 offen sc1"], [(12, 16)], cnt="s33")
        a(f"v_mov_b32 v3, 1\nds_write_b32 v2, v3 offset:{F0}\ns_mov_b64 exec, -1\nL_c_noP:")
    a(f"s_lshl_b32 s30, s5, 13\ns_lshl_b32 s31, s4, 10\ns_add_u32 s30, s30, s31\ns_add_u32 s30, s30, {Q_OFF}\ns_add_u32 s32, s30, {DUAL}")
    poll_dual([f"buffer_load_dwordx4 v[12:15], v1, {WS}, s30 offen sc1", f"buffer_load_dwordx4 v[16:19], v1, {WS}, s32 offen sc1"], [(12+k, 16+k) for k in range(4)], cnt="s33")
    a(f"ds_write_b128 v1, v[12:15] offset:{QL}\nv_mov_b32 v3, 1\ns_waitcnt lgkmcnt(0)\nds_write_b32 v2, v3 offset:{FQ}")
    stamp(2)
    a(f"""v_and_b32 v3, 7, v0
    v_lshlrev_b32 v3, 4, v3
    s_lshl_b32 s30, s5, 7
    v_add_u32 v3, s30, v3
    s_cmp_eq_u32 s2, 0
    s_cselect_b64 vcc, -1, 0
    v_cndmask_b32 v10, v3, v1, vcc
    v_mov_b32 v16, 0
    s_mov_b32 s30, {CERT_OFF}""")
    L = a.label("cert"); D = a.label("certd")
    a(f"""s_mov_b32 s33, 0
    {L}:
    buffer_load_dwordx4 v[12:15], v10, {WS}, s30 offen sc1
    s_waitcnt vmcnt(0)
    v_xor_b32 v12, {TAG}, v12
    v_xor_b32 v13, {TAG}, v13
    v_xor_b32 v14, {TAG}, v14
    v_xor_b32 v15, {TAG}, v15
    v_or3_b32 v12, v12, v13, v14
    v_or_b32 v12, v12, v15
    v_cmp_ne_u32 vcc, 0, v12
    s_cbranch_vccz {D}
    s_add_u32 s33, s33, 1
    s_cmp_lt_u32 s33, {SPIN_MAX}
    s_cbranch_scc1 {L}
    {D}:
    s_cmp_lg_u32 s2, 0
    s_cbranch_scc1 L_c_notag
    v_mov_b32 v3, {TAG}
    s_mov_b32 s30, {XN_OFF}
    s_mov_b64 exec, 1
    buffer_store_dword v3, v2, {WS}, s30 offen sc1
    s_mov_b64 exec, -1
    L_c_notag:""")
    stamp(3)
    if dry: a("s_mov_b64 exec, 0\ns_branch L_st_tail\nL_dry2:\ns_branch L_final\nL_dry3:\ns_nop 7\ns_mov_b64 exec, -1")
    lds_spin(KDONE, 8)
    a(f"""s_lshl_b32 s34, s5, 3
    s_add_u32 s34, s34, s4
    s_lshl_b32 s30, s34, 13
    s_add_u32 s30, s30, {SC_OFF}
    s_add_u32 s32, s30, 4096
    s_lshl_b32 s35, s34, 9
    s_add_u32 s35, s35, {ST_OFF}
    v_and_b32 v3, 31, v0
    v_lshlrev_b32 v8, 4, v3""")
    if probe:
        poll([f"buffer_load_dwordx4 v[12:15], v8, {WS}, s35 offen sc1"], range(12, 16), cnt="s33")
        poll([f"buffer_load_dwordx4 {vr(32+4*k)}, v1, {WS}, {'s30' if k < 4 else 's32'} offen offset:{(k&3)*1024} sc1" for k in range(8)], range(32, 64), cnt="s33")
    else:
        poll([f"buffer_load_dwordx4 v[12:15], v8, {WS}, s35 offen sc1"] +
             [f"buffer_load_dwordx4 {vr(32+4*k)}, v1, {WS}, {'s30' if k < 4 else 's32'} offen offset:{(k&3)*1024} sc1" for k in range(8)],
             list(range(12, 16)) + list(range(32, 64)), cnt="s33")
    stamp(4)
    for k in range(8): a(f"ds_write_b128 v1, {vr(32+4*k)} offset:{SCL+k*1024}")
    a("v_mov_b32 v16, v12\nv_mov_b32 v18, v14")
    for n in (1, 2, 4, 8):
        for v in ("v16", "v18"): a(f"v_max_f32_dpp {v}, {v}, {v} row_ror:{n} row_mask:0xf bank_mask:0xf")
    for v, t in (("v16", "v3"), ("v18", "v4")): a(f"v_mov_b32 {t}, {v}\nv_permlane16_swap_b32 {t}, {v}\nv_max_f32 {v}, {v}, {t}")
    a(f"""v_sub_f32 v12, v12, v16
    v_sub_f32 v14, v14, v18
    v_mul_f32 v12, {CEXP}, v12
    v_mul_f32 v14, {CEXP}, v14
    v_exp_f32 v12, v12
    v_exp_f32 v14, v14
    v_mul_f32 v17, v12, v13
    v_mul_f32 v19, v14, v15""")
    for n in (1, 2, 4, 8):
        for v in ("v17", "v19"): a(f"v_add_f32_dpp {v}, {v}, {v} row_ror:{n} row_mask:0xf bank_mask:0xf")
    for v, t in (("v17", "v3"), ("v19", "v4")): a(f"v_mov_b32 {t}, {v}\nv_permlane16_swap_b32 {t}, {v}\nv_add_f32 {v}, {v}, {t}")
    a(f"""v_rcp_f32 v17, v17
    v_rcp_f32 v19, v19
    v_mul_f32 v16, {CEXP}, v16
    v_mul_f32 v18, {CEXP}, v18
    v_mov_b32 v3, 1
    ds_write_b128 v2, v[16:19] offset:{MS}
    s_waitcnt lgkmcnt(0)
    ds_write_b32 v2, v3 offset:{FP}""")
    a("s_cmp_eq_u32 s28, 2\ns_cbranch_scc1 L_c_nomodg")
    srd(96, 36, 7168)
    a(f"""s_mul_i32 s30, s5, 896
    s_mov_b32 exec_hi, 0xffffff
    buffer_load_dwordx4 v[28:31], v1, s[96:99], s30 offen
    s_mov_b32 exec_hi, -1
    s_mul_i32 s30, s5, 5376
    s_add_u32 s30, s30, {MOD_OFF+1792}
    s_add_u32 s32, s30, {DUAL}
    v_and_b32 v3, 31, v0
    v_lshlrev_b32 v8, 4, v3""")
    poll_dual([f"buffer_load_dwordx4 {vr(12+4*k)}, {'v1' if k < 3 else 'v8'}, {WS}, s30 offen offset:{k*1024} sc1" for k in range(4)] +
              [f"buffer_load_dwordx4 {vr(32+4*k)}, {'v1' if k < 3 else 'v8'}, {WS}, s32 offen offset:{k*1024} sc1" for k in range(4)],
              [(12+k, 32+k) for k in range(16)], cnt="s33")
    for k in range(4): a(f"ds_write_b128 {'v1' if k < 3 else 'v8'}, {vr(12+4*k)} offset:{MODL+k*1024}")
    a(f"s_mov_b32 exec_hi, 0xffffff\nds_write_b128 v1, v[28:31] offset:{XL}\ns_mov_b32 exec_hi, -1\nL_c_nomodg:")
    stamp(6)
    if diag: a("s_waitcnt lgkmcnt(0)\ns_mov_b32 s83, s92")
    a("L_c_skip:")
    a(f"""s_mul_i32 s30, s5, {28*1792}
    s_lshl_b32 s31, s7, 6
    s_add_u32 s30, s30, s31
    s_add_u32 s68, s30, {PD_OFF}
    s_add_u32 s69, s68, {2*1792}
    s_add_u32 s70, s68, {4*1792}
    s_add_u32 s71, s68, {6*1792}
    v_lshrrev_b32 v3, 4, v0
    v_mul_u32_u24 v3, {7*1792}, v3
    v_and_b32 v4, 15, v0
    v_lshl_add_u32 v8, v4, 2, v3
    s_lshl_b32 s30, s7, 4
    v_add_u32 v9, s30, v4
    v_lshlrev_b32 v10, 2, v9
    v_lshlrev_b32 v9, 1, v9
    s_mul_i32 s72, s5, 896""")
    srd(96, 58, 7168)
    a("s_waitcnt lgkmcnt(0)\ns_barrier\ns_cmp_eq_u32 s28, 2\ns_cbranch_scc1 L_st_end\ns_barrier")
    a(f"ds_read_b32 v20, v10 offset:{X1L}\nds_read_u16 v21, v9 offset:{MODL+2688}\ns_waitcnt lgkmcnt(0)\nv_lshlrev_b32 v21, 16, v21\ns_barrier")
    stamp(5)
    a("L_final:\ns_mov_b32 s33, 0")
    L = a.label("pd"); D = a.label("pdd")
    a(f"{L}:")
    guard("\n".join(f"buffer_load_dword v{12+k}, v8, {WS}, s{68+(k>>1)} offen offset:{(k&1)*1792} sc1" for k in range(7)))
    a("s_waitcnt vmcnt(0)")
    check(range(12, 19), "v3")
    a(f"s_cbranch_vccz {D}\ns_add_u32 s33, s33, 1\ns_cmp_lt_u32 s33, {SPIN_MAX}\ns_cbranch_scc1 {L}\n{D}:")
    stamp(6)
    a("v_add_f32 v12, v12, v13\nv_add_f32 v14, v14, v15\nv_add_f32 v16, v16, v17\nv_add_f32 v12, v12, v18\nv_add_f32 v14, v14, v16\nv_add_f32 v12, v12, v14")
    xrow_reduce("v_add_f32", "v12", "v3")
    round1("v12"); a("v_mul_f32 v12, v12, v21"); round1("v12"); a("v_add_f32 v12, v12, v20\nv_cvt_pk_bf16_f32 v12, v12, v12")
    guard("s_mov_b64 exec, 0xffff\nbuffer_store_short v12, v9, s[96:99], s72 offen")
    if dry: a("s_cbranch_execz L_dry3")
    if diag:
        a("s_mov_b64 exec, -1")
        stamp(7)
        a(f"""L_finish:
        s_waitcnt lgkmcnt(0)
        s_mov_b64 exec, -1
        v_mov_b32 v4, 0""")
        for i in range(8): a(f"v_writelane_b32 v4, s{80+2*i}, {i}")
        a("s_cmp_eq_u32 s81, 15\ns_cselect_b32 s30, s83, s80\nv_writelane_b32 v4, s30, 0")
        a(f"""s_getreg_b32 s30, hwreg(HW_REG_HW_ID)
        v_lshrrev_b32 v3, 6, v0
        s_lshl_b32 s30, s2, 9
        v_lshlrev_b32 v3, 2, v0
        s_lshl_b32 s31, s81, 5
        s_add_u32 s30, s30, s31
        s_add_u32 s30, s30, {TS_OFF}
        s_mov_b64 exec, 0xff
        buffer_store_dword v4, v3, {WS}, s30 offen""")
        if dbg:
            a(f"""s_mov_b64 exec, 1
            s_not_b32 s30, s80
            v_mov_b32 v5, s30
            global_atomic_umax v2, v5, s[60:61] sc1
            v_mov_b32 v5, s80
            global_atomic_umax v2, v5, s[60:61] offset:4 sc1
            s_cmp_eq_u32 s81, 15
            s_cbranch_scc0 L_d1
            s_mov_b64 exec, 0xfc
            global_atomic_umax v3, v4, s[60:61] sc1
            L_d1:
            s_cmp_eq_u32 s81, 0
            s_cbranch_scc0 L_d2
            s_mov_b64 exec, 0x3e
            global_atomic_umax v3, v4, s[60:61] offset:32 sc1
            L_d2:
            s_cmp_eq_u32 s81, 8
            s_cbranch_scc0 L_end
            s_mov_b64 exec, 0x18
            global_atomic_umax v3, v4, s[60:61] offset:44 sc1
            s_mov_b64 exec, 0x4
            global_atomic_umax v3, v4, s[60:61] offset:24 sc1""")
    a("L_end:\ns_endpgm")
    body = a.text()
    if diag: body = body.replace("    s_and_b32 s4, s2, 7\n", "    s_waitcnt lgkmcnt(0)\n    s_mov_b32 s81, s3\n    s_and_b32 s4, s2, 7\n", 1)
    hdr = open("adaLN_cond__sliding_block_cached__glu_gated_glu__decode.s.ref").read().split("; Override launch")[0]
    return (hdr + f"; @launch grid=(256,1,1) block=(1024,1,1) lds={LDS_BYTES}\n.amdgcn_target \"amdgcn-amd-amdhsa--gfx950\"\n.text\n.globl {NAME}\n.p2align 8\n.type {NAME},@function\n{NAME}:\n"
            + body + f""".section .rodata,"a"
.p2align 6
.amdhsa_kernel {NAME}
  .amdhsa_next_free_vgpr 128
  .amdhsa_next_free_sgpr 102
  .amdhsa_accum_offset 128
  .amdhsa_group_segment_fixed_size 0
  .amdhsa_kernarg_size 112
  .amdhsa_user_sgpr_count 2
  .amdhsa_user_sgpr_kernarg_segment_ptr 1
  .amdhsa_system_sgpr_workgroup_id_x 1
  .amdhsa_float_denorm_mode_32 3
.end_amdhsa_kernel
""")

if __name__ == "__main__":
    kw = eval("dict(%s)" % (sys.argv[2] if len(sys.argv) > 2 else ""))
    open(sys.argv[1], "w").write(gen(**kw))
```

```python
import re

def regs_of(tok):
    tok = tok.strip()
    tok = re.sub(r"^-|^\||\|$|^abs\(|\)$", "", tok)
    m = re.fullmatch(r"([vsa])(\d+)", tok)
    if m: return {m.group(1) + m.group(2)}
    m = re.fullmatch(r"([vsa])\[(\d+):(\d+)\]", tok)
    if m: return {m.group(1) + str(i) for i in range(int(m.group(2)), int(m.group(3)) + 1)}
    if tok in ("vcc", "vcc_lo", "vcc_hi"): return {"vcc"}
    if tok in ("exec", "exec_lo", "exec_hi"): return {"exec"}
    if tok == "m0": return {"m0"}
    return set()

TRANS = ("v_exp_f32", "v_log_f32", "v_rcp_f32", "v_rsq_f32", "v_sqrt_f32", "v_sin_f32", "v_cos_f32")

class Ins:
    def __init__(self, text):
        self.text = text
        t = text.split(";")[0].strip()
        parts = t.split(None, 1)
        self.op = parts[0]
        rest = parts[1] if len(parts) > 1 else ""
        toks = [x.strip() for x in rest.split(",")] if rest else []
        mods = ""
        if toks:
            last = toks[-1].split(None, 1)
        m = re.search(r"\s(offen|idxen|offset:|offset0:|offset1:|row_|quad_perm|bank_mask|sc0|sc1|nt\b|lds\b|bound_ctrl|op_sel|glc|wave_|cbsz|abid|blgp|neg_|clamp|off\b)", " " + rest)
        if m:
            cut = m.start()
            mods = (" " + rest)[cut:]
            rest = (" " + rest)[:cut]
        self.mods = mods
        self.ops = [x.strip() for x in rest.split(",") if x.strip()]
        self.w = set(); self.r = set()
        op = self.op
        self.cls = "other"
        self.dpp = ("row_" in mods and ("row_ror" in mods or "row_sh" in mods or "row_bcast" in mods or "row_newbcast" in mods or "row_mirror" in mods or "row_half" in mods)) or "quad_perm" in mods
        R = lambda i: regs_of(self.ops[i]) if i < len(self.ops) else set()
        allr = lambda a: set().union(*[regs_of(x) for x in self.ops[a:]]) if len(self.ops) > a else set()
        if op.startswith("v_mfma"):
            self.cls = "mfma"; self.w = R(0); self.ab = R(1) | R(2); self.c = R(3); self.r = self.ab | self.c
        elif op.startswith("v_permlane") and "swap" in op:
            self.cls = "valu"; self.w = R(0) | R(1); self.r = R(0) | R(1); self.perml = True
        elif op.startswith("v_"):
            self.cls = "valu"
            self.w = R(0); self.r = allr(1)
            if op.startswith(("v_add_co", "v_sub_co", "v_addc_co", "v_subb_co")): self.w |= R(1); self.r = allr(2)
            if op.startswith(("v_fmac", "v_dot2c", "v_pk_fmac")) or self.dpp: self.r |= R(0)
            if op.startswith("v_cndmask") and len(self.ops) == 3: self.r |= {"vcc"}
        elif op.startswith(("buffer_", "global_")):
            self.cls = "vmem"
            if "load" in op and " lds" not in mods:
                self.w = R(0); self.r = allr(1)
            elif "atomic" in op and "sc0" in mods and op.startswith("global_"):
                self.w = R(0); self.r = allr(1)
            else:
                self.r = allr(0)
                if " lds" in mods: self.r |= {"m0"}
            self.wide_store = ("store" in op and ("x3" in op or "x4" in op))
            if self.wide_store: self.data = R(0) if op.startswith("buffer_") else R(1)
        elif op.startswith("ds_"):
            self.cls = "ds"
            if op.startswith(("ds_read", "ds_bpermute", "ds_permute", "ds_swizzle")) or "_rtn" in op:
                self.w = R(0); self.r = allr(1)
            else: self.r = allr(0)
        elif op.startswith("s_"):
            self.cls = "salu"
            if op.startswith(("s_cmp", "s_cbranch", "s_branch", "s_waitcnt", "s_nop", "s_barrier", "s_endpgm", "s_sleep", "s_setprio", "s_bitcmp")):
                self.r = allr(0)
            else:
                self.w = R(0); self.r = allr(1)
        self.states = 1
        if op == "s_nop": self.states = int(self.ops[0], 0) + 1

def need(prod, cons):
    n = 0
    vw = {x for x in prod.w if x[0] in "va" and x not in ("vcc",)}
    sw = {x for x in prod.w if x[0] == "s" or x == "vcc"}
    if prod.cls == "valu":
        if cons.cls == "valu" and cons.dpp and vw & cons.r: n = max(n, 2)
        if cons.cls == "mfma" and vw & cons.r: n = max(n, 2)
        if cons.cls == "valu" and getattr(cons, "perml", False) and vw & cons.r: n = max(n, 2)
        if cons.op.startswith(("v_readlane", "v_readfirstlane")) and vw & cons.r: n = max(n, 1)
        if cons.cls == "valu" and sw & cons.r: n = max(n, 4 if cons.op.startswith(("v_readlane", "v_writelane")) else 2)
        if cons.cls == "vmem" and sw & cons.r: n = max(n, 5)
        if cons.cls == "salu" and sw & cons.r: n = max(n, 1)
        if prod.op.startswith(TRANS) and cons.cls in ("valu", "mfma") and vw & cons.r: n = max(n, 1)
        if "exec" in prod.w and cons.cls in ("valu", "mfma"): n = max(n, 5)
    if prod.cls == "mfma":
        P = 4 if "16x16x32" in prod.op or "16x16x16" in prod.op else 8
        full = {4: 8, 8: 12}[P]
        if cons.cls == "mfma":
            if prod.w & cons.ab: n = max(n, full)
            if prod.w & cons.c and prod.w != cons.c: n = max(n, full - 2)
            if prod.w & cons.w and prod.w != cons.c: n = max(n, full)
        elif cons.cls in ("valu", "vmem", "ds"):
            if prod.w & (cons.r | cons.w): n = max(n, full)
        if cons.cls == "valu" and prod.c & cons.w: n = max(n, {4: 3, 8: 7}[P])
    if prod.cls == "salu" and "m0" in prod.w and cons.cls == "vmem" and "m0" in cons.r: n = max(n, 1)
    if prod.cls == "vmem" and getattr(prod, "wide_store", False):
        if cons.w & prod.data: n = max(n, 2)
    return n

class Asm:
    def __init__(self):
        self.out = []; self.hist = []; self.nlab = 0; self.vm = []; self.pads = 0
    def raw(self, s): self.out.append(s)
    def __call__(self, s):
        for line in s.strip("\n").split("\n"):
            line = line.strip()
            if not line or line.startswith(";"):
                if line: self.out.append("    " + line)
                continue
            if line.endswith(":"):
                self.out.append(line); continue
            ins = Ins(line)
            dist = 0; pad = 0
            for p in reversed(self.hist[-24:]):
                k = need(p, ins) - dist
                if k > pad: pad = k
                dist += p.states
                if dist >= 21: break
            while pad > 0:
                k = min(pad, 16); nop = Ins(f"s_nop {k-1}")
                self.out.append(f"    s_nop {k-1}"); self.hist.append(nop); pad -= k; self.pads += 1
            self.out.append("    " + line); self.hist.append(ins)
    def label(self, p="L"):
        self.nlab += 1; return f"{p}_{self.nlab}"
    def vm_reset(self): self.vm = []
    def vmem(self, s, tag=None):
        self(s); self.vm.append(tag)
    def vm_wait(self, tag):
        idx = max(i for i, t in enumerate(self.vm) if t == tag)
        n = len(self.vm) - 1 - idx
        self(f"s_waitcnt vmcnt({min(n,63)})")
    period = 8
    def vm_pace(self, d):
        import math
        n = self.npace = getattr(self, "npace", 0) + 1
        lo = int(math.floor(d + 1e-9)); hi_len = int(round((d - lo)*self.period))
        t = lo + 1 if (n % self.period) < hi_len else lo
        self(f"s_waitcnt vmcnt({t-1})")
    def text(self): return "\n".join(self.out) + "\n"
```

```python
import struct, math, sys
from asm2 import Asm
NAME = "adaLN_cond__sliding_block_cached__glu_gated_glu__decode_kernel"
def f32(x): return "0x%08x" % struct.unpack("<I", struct.pack("<f", x))[0]

MOD_OFF, Q_OFF, SC_OFF, ST_OFF, PA_OFF, PD_OFF, TS_OFF = 0x0, 0x10000, 0x20000, 0xA0000, 0xB0000, 0x120000, 0x200000
DUAL = 0x190000
CERT_OFF, XN_OFF = 0xA8000, 0xA9000
TAG = 's78'
FQ, FP, CRIT, KDONE, RC0, RC1, RC2, TAGC, MS, F0, XC, FC, F1, TRIG, VISS = 0, 4, 8, 12, 16, 20, 24, 28, 32, 48, 52, 56, 60, 64, 68
OACC, GUACC, STL, X1L, XST, QL, MODL, XL, SCL, RED, GU = 0x100, 0x500, 0x80, 0x900, 0x900, 0x1000, 0x1400, 0x2200, 0x2800, 0x4800, 0x8000
KST = 0x16000
LDS_BYTES = 0x26000
W0, W1, W2 = 32, 64, 96
SPIN_MAX = 1 << 20

def gen(dk=3, dv=3, dv3=4, dw=2, diag=False, dry=True, pol="nt", dbg=False, hold=False, probe=False, exp='', pdefer=True, marks=None, dkp=3, pw=3, remap=True, pprobe=False, uplate=True, sprio=1, dlast=3, dwp=1, kslow=False, vslow=False, wpre=False, d0=8, dkh=None, dvhp=4, split=True, yprio=0, coop=False, period=8, trig=12, sq=True, ssa=False, warm=True, fastfin=True, viss=7, dkq=4, dq=8, upre=True, selp=True, outpol='', wpol='nt'):
    a = Asm(); a.period = period
    SELLO, SELHI, HIM, CEXP = "s64", "s65", "s66", "s67"
    def vr(b, n=4): return f"v[{b}:{b+n-1}]"
    mode = {'stream': False}
    def stamp(i, force=False):
        if diag and (force or not (marks and mode['stream'])): a(f"s_memrealtime s[{80+2*i}:{81+2*i}]")
    def mark(n):
        if marks and n in marks: stamp(1 + marks.index(n), True)
    def srd(d, p, size):
        a(f"s_mov_b32 s{d}, s{p}\ns_mov_b32 s{d+1}, s{p+1}\ns_mov_b32 s{d+2}, {size}\ns_mov_b32 s{d+3}, 0x20000")
    def lds_spin(off, target, vt="v3", st="s30", nap=True):
        L = a.label("spin"); D = a.label("spind")
        a(f"""{L}:
        ds_read_b32 {vt}, v2 offset:{off}
        s_waitcnt lgkmcnt(0)
        v_readfirstlane_b32 {st}, {vt}
        s_cmp_ge_u32 {st}, {target}
        s_cbranch_scc1 {D}
        {'s_sleep 1' if nap else ''}
        s_branch {L}
        {D}:""")
    def lds_inc(off, vt="v3"):
        a(f"v_mov_b32 {vt}, 1\ns_mov_b64 exec, 1\nds_add_u32 v2, {vt} offset:{off}\ns_mov_b64 exec, -1")
    def unpack2(lo, hi, pk):
        a(f"v_lshlrev_b32 {lo}, 16, {pk}\nv_and_b32 {hi}, {HIM}, {pk}") if lo != pk else a(f"v_and_b32 {hi}, {HIM}, {pk}\nv_lshlrev_b32 {lo}, 16, {pk}")
    def round2(x, y, t):
        a(f"v_cvt_pk_bf16_f32 {t}, {x}, {y}"); unpack2(x, y, t)
    def round1(x):
        a(f"v_cvt_pk_bf16_f32 {x}, {x}, {x}\nv_lshlrev_b32 {x}, 16, {x}")
    def transpose_inplace(Wb, t0="v4", t1="v5"):
        P = lambda i, d: (f"v{Wb+8*i+d}", f"v{Wb+8*i+4+d}")
        for i in range(4):
            e, o = P(i, i)
            a(f"v_perm_b32 {t0}, {o}, {e}, {SELLO}\nv_perm_b32 {o}, {o}, {e}, {SELHI}\nv_mov_b32 {e}, {t0}")
            for d in range(i+1, 4):
                e, o = P(i, d); e2, o2 = P(d, i)
                a(f"""v_perm_b32 {t0}, {o}, {e}, {SELLO}
                v_perm_b32 {t1}, {o}, {e}, {SELHI}
                v_perm_b32 {e}, {o2}, {e2}, {SELLO}
                v_perm_b32 {o}, {o2}, {e2}, {SELHI}
                v_mov_b32 {e2}, {t0}
                v_mov_b32 {o2}, {t1}""")
    def block_voff(v, stride):
        a(f"v_lshrrev_b32 v3, 3, v0\nv_mul_u32_u24 v3, {8*stride}, v3\nv_and_b32 {v}, 7, v0\nv_lshl_add_u32 {v}, {v}, 4, v3")
    def ffpace(pace):
        L = a.label("ff")
        a(f"s_cmp_ge_u32 s77, 8\ns_cbranch_scc1 {L}")
        a.vm_pace(pace)
        a(f"ds_read_b32 v3, v2 offset:{VISS}\ns_waitcnt lgkmcnt(0)\nv_readfirstlane_b32 s77, v3\n{L}:")
    def load_block(dst, voff, sr, soff, stride, pace=None, tag=None, fill=None, ff=False):
        pol = wpol if stride in (896, 3584) else 'nt'
        for i in range(8):
            if ff: ffpace(pace)
            elif pace: a.vm_pace(pace)
            a.vmem(f"buffer_load_dwordx4 {vr(dst+4*i)}, {voff}, s[{sr}:{sr+3}], {soff} offen {pol}", tag)
            if i < 7: a(f"s_add_u32 {soff}, {soff}, {stride}")
            if fill and i in fill: fill[i]()
    def dma_block(ldsbase_s, voff, sr, soff, stride, pace=None, tag=None, fill=None, ff=False):
        pol = wpol
        for i in range(8):
            a(f"s_add_u32 m0, {ldsbase_s}, {i*1024}")
            if ff: ffpace(pace)
            elif pace: a.vm_pace(pace)
            a.vmem(f"buffer_load_dwordx4 {voff}, s[{sr}:{sr+3}], {soff} offen {pol} lds", tag)
            if i < 7: a(f"s_add_u32 {soff}, {soff}, {stride}")
            if fill and i in fill: fill[i]()
    def poll(loads, regs, vt="v3", cnt="s31"):
        L = a.label("poll"); D = a.label("polld")
        if 'rtt' in exp: a("s_mov_b32 s76, 0\ns_mov_b32 s77, 0")
        a(f"s_mov_b32 {cnt}, 0\n{L}:")
        if 'rtt' in exp: a("s_memrealtime s[96:97]")
        for l in loads: a(l)
        a("s_waitcnt vmcnt(0)")
        if 'rtt' in exp: a("s_memrealtime s[98:99]\ns_waitcnt lgkmcnt(0)\ns_sub_u32 s98, s98, s96\ns_lshl_b32 s77, s77, 8\ns_lshr_b32 s96, s76, 24\ns_or_b32 s77, s77, s96\ns_lshl_b32 s76, s76, 8\ns_lshr_b32 s98, s98, 1\ns_min_u32 s98, s98, 255\ns_or_b32 s76, s76, s98")
        check(regs, vt)
        a(f"""s_cbranch_vccz {D}
        s_add_u32 {cnt}, {cnt}, 1
        s_cmp_lt_u32 {cnt}, {SPIN_MAX}
        s_cbranch_scc1 {L}
        {D}:""")
        a.vm_reset()
    def poll_dual(loads, pairs, cnt="s31"):
        L = a.label("pollx"); D = a.label("pollxd")
        a(f"s_mov_b32 {cnt}, 0\n{L}:")
        for l in loads: a(l)
        a("s_waitcnt vmcnt(0)")
        for k, (x, y) in enumerate(pairs):
            a(f"v_xor_b32 v{y}, v{x}, v{y}\nv_xor_b32 v{y}, {TAG}, v{y}")
            if k: a(f"v_or_b32 v{pairs[0][1]}, v{pairs[0][1]}, v{y}")
        a(f"""v_cmp_ne_u32 vcc, 0, v{pairs[0][1]}
        s_cbranch_vccz {D}
        s_add_u32 {cnt}, {cnt}, 1
        s_cmp_lt_u32 {cnt}, {SPIN_MAX}
        s_cbranch_scc1 {L}
        {D}:""")
        a.vm_reset()
    def sprobe(base_code, offs, regs):
        L = a.label("sp"); D = a.label("spd"); n = len(offs)
        a(base_code)
        a(f"s_add_u32 s34, s62, s30\ns_addc_u32 s35, s63, 0\ns_add_u32 s100, s34, {DUAL}\ns_addc_u32 s101, s35, 0\ns_mov_b32 s33, 0\n{L}:")
        a("s_mov_b32 s31, 0")
        for k0 in range(0, n, len(regs)//2):
            part = offs[k0:k0+len(regs)//2]
            for k, o in enumerate(part): a(f"s_load_dword s{regs[2*k]}, s[34:35], {o:#x} glc\ns_load_dword s{regs[2*k+1]}, s[100:101], {o:#x} glc")
            a("s_waitcnt lgkmcnt(0)")
            for k, o in enumerate(part): a(f"s_xor_b32 s30, s{regs[2*k]}, s{regs[2*k+1]}\ns_xor_b32 s30, s30, {TAG}\ns_or_b32 s31, s31, s30")
        a(f"s_cmp_eq_u32 s31, 0\ns_cbranch_scc1 {D}\ns_add_u32 s33, s33, 1\ns_cmp_lt_u32 s33, 256\ns_cbranch_scc1 {L}\n{D}:")
    def tag_load(v="v5"):
        a(f"s_mov_b32 s30, {XN_OFF}")
        a.vmem(f"buffer_load_dword {v}, v2, s[24:27], s30 offen sc1", "tag")
    def tag_wait(v="v5", wait=True):
        if wait: a.vm_wait("tag")
        a(f"v_readfirstlane_b32 {TAG}, {v}\ns_add_u32 {TAG}, {TAG}, 0x9e3779b9")
    def check(regs, vt):
        r = list(regs)
        if len(r) == 1: a(f"v_cmp_eq_u32 vcc, -1, v{r[0]}"); return
        if len(r) == 2: a(f"v_max_u32 {vt}, v{r[0]}, v{r[1]}"); r = []
        else: a(f"v_max3_u32 {vt}, v{r[0]}, v{r[1]}, v{r[2]}"); r = r[3:]
        while r:
            if len(r) >= 2: a(f"v_max3_u32 {vt}, {vt}, v{r[0]}, v{r[1]}"); r = r[2:]
            else: a(f"v_max_u32 {vt}, {vt}, v{r[0]}"); r = []
        a(f"v_cmp_eq_u32 vcc, -1, {vt}")
    def cnt_poll(off, targets):
        L = a.label("cp"); D = a.label("cpd"); n = len(targets)
        a(f"s_mov_b32 s31, 0\n{L}:")
        if n == 1: a(f"global_load_dword v4, {off}, s[60:61] sc1")
        else: a(f"global_load_dwordx2 v[4:5], {off}, s[60:61] sc1")
        a("s_waitcnt vmcnt(0)")
        a(f"v_cmp_gt_u32 vcc, {targets[0]}, v4")
        if n == 2: a(f"v_cmp_gt_u32 s[32:33], {targets[1]}, v5\ns_or_b64 vcc, vcc, s[32:33]")
        a(f"""s_cbranch_vccz {D}
        s_add_u32 s31, s31, 1
        s_cmp_lt_u32 s31, {SPIN_MAX}
        s_cbranch_scc1 {L}
        {D}:""")
        a.vm_reset()
    def row_reduce(op, v, steps=(1, 2, 4, 8)):
        for n in steps: a(f"{op}_dpp {v}, {v}, {v} row_ror:{n} row_mask:0xf bank_mask:0xf")
    def xrow_reduce(op, v, t):
        a(f"v_mov_b32 {t}, {v}\nv_permlane16_swap_b32 {t}, {v}\n{op} {v}, {v}, {t}\nv_mov_b32 {t}, {v}\nv_permlane32_swap_b32 {t}, {v}\n{op} {v}, {v}, {t}")
    def guard(text):
        if not dry: a(text); return
        L = a.label("g"); a(f"s_cbranch_execz {L}"); a(text); a(f"{L}:")
    def setexec(val):
        lo, hi = val & 0xffffffff, val >> 32
        return f"s_mov_b32 exec_lo, {lo:#x}\ns_mov_b32 exec_hi, {hi:#x}"
    def finish(): a("s_branch L_finish" if diag else "s_endpgm")

    a(f"""
    s_cmp_ge_u32 s2, 256
    s_cbranch_scc1 L_end
    s_load_dwordx16 s[36:51], s[0:1], 0
    s_load_dwordx8 s[52:59], s[0:1], 64
    s_load_dwordx4 s[60:63], s[0:1], 96
    """)
    if diag:
        for i in range(1, 8): a(f"s_mov_b32 s{80+2*i}, 0")
    stamp(0)
    a(f"""
    v_lshrrev_b32 v1, 6, v0
    v_and_b32 v0, 63, v0
    v_mov_b32 v2, 0
    v_readfirstlane_b32 s3, v1
    s_and_b32 s4, s2, 7
    s_bfe_u32 s5, s2, 0x30003
    s_lshr_b32 s6, s2, 6
    s_cmp_eq_u32 s6, 0
    s_cselect_b32 s28, 1, 2
    s_cmp_eq_u32 s6, 1
    s_cselect_b32 s28, 0, s28
    s_cmp_ge_u32 s4, {0 if 'nohp' in exp else 2}
    s_cselect_b32 s28, 0, s28
    s_mov_b32 {SELLO}, 0x05040100
    s_mov_b32 {SELHI}, 0x07060302
    s_mov_b32 {HIM}, 0xffff0000
    s_mov_b32 {CEXP}, {f32(math.log2(math.e)/16)}
    s_cmp_ge_u32 s3, 8
    s_cbranch_scc1 L_notstream
    """)
    def roles():
        a(f"""s_add_u32 s30, s6, {1 if remap else 0}
        s_and_b32 s30, s30, 3
        s_lshl_b32 s7, s4, 2
        s_add_u32 s7, s7, s30
        s_sub_u32 s7, s7, 4
        s_lshl_b32 s30, s4, 1
        s_add_u32 s30, s30, s6
        s_cmp_ge_u32 s4, 2
        s_cselect_b32 s7, s7, s30""")
    def pro_roles():
        a(f"""s_mul_i32 s30, s5, 6
        s_add_u32 s30, s30, s4
        s_add_u32 s30, s30, 14
        s_lshl_b32 s31, s5, 1
        s_add_u32 s31, s31, s4
        s_cmp_ge_u32 s4, 2
        s_cselect_b32 s29, s30, s31
        s_cselect_b32 s31, 1, 2
        s_lshl_b32 s30, s6, 8
        s_add_u32 s30, s30, s29
        s_cmp_lt_u32 s30, {0 if 'nohp' in exp else 42}
        s_cselect_b32 s79, 1, 0
        s_lshl_b32 s30, s4, 3
        s_add_u32 s30, s30, s5
        s_cmp_eq_u32 s6, {'s31' if 'nohp' not in exp else 9}
        s_cselect_b32 s29, s30, s29
        s_cselect_b32 s79, 2, s79""")
    WS = "s[24:27]"
    def ws_srd(): srd(24, 62, hex(0x300000 if diag else 0x200000))

    def g_prep():
        a(f"s_lshl_b32 s33, s3, 13\ns_add_u32 s33, s33, {GU}\nv_lshlrev_b32 v3, 4, v0\nv_add_u32 v3, s33, v3")
        for i in range(8): a(f"ds_read_b128 {vr(W0+4*i)}, v3 offset:{i*1024}")
        a(f"""v_lshrrev_b32 v3, 4, v0
        v_and_b32 v4, 1, v0
        v_lshl_add_u32 v3, v3, 1, v4
        v_bfe_u32 v4, v0, 1, 2
        v_lshlrev_b32 v4, 1, v4
        v_lshl_add_u32 v12, v3, 3, v4
        s_lshl_b32 s30, s3, 6
        v_add_u32 v13, s30, v12
        v_lshlrev_b32 v3, 1, v13
        ds_read_b32 v14, v3 offset:{MODL+896}
        ds_read_b32 v16, v3 offset:{MODL+1792}
        v_lshlrev_b32 v13, 2, v13
        v_and_b32 v3, 7, v0
        v_cmp_gt_u32 vcc, 7, v3
        v_cndmask_b32 v18, 0, v3, vcc
        v_mov_b32 v4, {f32(1/7)}
        v_cndmask_b32 v20, 0, v4, vcc
        v_mov_b32 v4, {f32(1/448)}
        v_cndmask_b32 v21, 0, v4, vcc
        v_lshlrev_b32 v19, 8, v18
        v_lshlrev_b32 v18, 3, v18
        v_lshlrev_b32 v22, 3, v0
        s_waitcnt lgkmcnt(0)""")
        unpack2("v14", "v15", "v14"); unpack2("v16", "v17", "v16")
        a("v_add_f32 v16, 1.0, v16\nv_add_f32 v17, 1.0, v17"); round2("v16", "v17", "v3")
        transpose_inplace(W0)
        guard("s_barrier")
        a("s_waitcnt vmcnt(0)")
        transpose_inplace(W1)
    def g_stage():
        guard("s_barrier")
        stamp(7, True)
        a(f"""ds_read_b64 v[24:25], v18 offset:{STL}
        ds_read_b32 v26, v19 offset:{X1L}
        ds_read_b64 v[28:29], v13 offset:{X1L}
        s_waitcnt lgkmcnt(1)
        v_mul_f32 v3, {f32(1/64)}, v24
        v_add_f32 v26, v26, v3
        v_fma_f32 v25, -v3, v24, v25
        v_mul_f32 v27, v26, v20""")
        row_reduce("v_add_f32", "v27", (1, 2, 4))
        a(f"v_sub_f32 v26, v26, v27\nv_mul_f32 v26, v26, v26\nv_fmac_f32 v25, {f32(64.0)}, v26\nv_mul_f32 v25, v25, v21")
        a("s_waitcnt lgkmcnt(0)\nv_cvt_pk_bf16_f32 v27, v27, v27")
        a("v_add_f32_dpp v25, v25, v25 row_ror:1 row_mask:0xf bank_mask:0xf\nv_lshlrev_b32 v27, 16, v27\nv_sub_f32 v28, v28, v27")
        a("v_add_f32_dpp v25, v25, v25 row_ror:2 row_mask:0xf bank_mask:0xf\nv_sub_f32 v29, v29, v27\nv_cvt_pk_bf16_f32 v3, v28, v29")
        a("v_add_f32_dpp v25, v25, v25 row_ror:4 row_mask:0xf bank_mask:0xf")
        unpack2("v28", "v29", "v3")
        round1("v25"); a(f"v_add_f32 v25, {f32(1e-5)}, v25"); round1("v25")
        a("v_sqrt_f32 v25, v25"); round1("v25")
        a("v_rcp_f32 v25, v25\nv_mul_f32 v28, v28, v25\nv_mul_f32 v29, v29, v25"); round2("v28", "v29", "v3")
        a("v_mul_f32 v28, v28, v16\nv_mul_f32 v29, v29, v17"); round2("v28", "v29", "v3")
        a("v_add_f32 v28, v28, v14\nv_add_f32 v29, v29, v15\nv_cvt_pk_bf16_f32 v24, v28, v29")
        for d in range(1, 4): a(f"v_mov_b32_dpp v{24+d}, v24 row_ror:{16-2*d} row_mask:0xf bank_mask:0xf")
        if 'gst' in exp: stamp(1, True)
        def comb(Wb, R, j):
            Dj = Wb + 4*j; up = j & 1
            a(f"v_add_f32_dpp v{R+((j>>1)&1)}, v{Dj+1-up}, v{Dj+up} row_ror:8 row_mask:{1<<(2*(j>>2)):#x} bank_mask:{0xc if up else 0x3:#x}")
        od = (0, 2, 4, 6, 1, 3, 5, 7)
        for j in od: a(f"v_mfma_f32_16x16x32_bf16 {vr(W0+4*j)}, v[24:27], {vr(W0+4*j)}, 0")
        for k, j in enumerate(od):
            a(f"v_mfma_f32_16x16x32_bf16 {vr(W1+4*j)}, v[24:27], {vr(W1+4*j)}, 0"); comb(W0, 28, j)
        a(f"v_permlane16_swap_b32 v28, v29\nv_cvt_f64_f32 v[4:5], v28\nds_add_f64 v22, v[4:5] offset:{GUACC}")
        for j in od: comb(W1, 30, j)
        if 'gst' in exp: stamp(2, True)
        a(f"v_permlane16_swap_b32 v30, v31\nv_cvt_f64_f32 v[6:7], v30\nds_add_f64 v22, v[6:7] offset:{GUACC+512}\ns_waitcnt lgkmcnt(0)")
        if 'gst' in exp: stamp(3, True)
        guard("s_barrier")
    a("L_stream:")
    mode['stream'] = True
    a(f"""s_lshl_b32 s30, s5, 3
    s_add_u32 s30, s30, s4
    s_lshl_b32 s31, s30, 22
    s_add_u32 s31, s31, 0x300000
    v_bfe_u32 v3, v0, 1, 3
    v_lshlrev_b32 v1, 10, v3
    v_and_b32 v4, 1, v0
    v_lshl_add_u32 v1, v4, 4, v1
    v_and_b32 v3, 7, v0
    v_lshrrev_b32 v4, 4, v0
    v_lshl_add_u32 v1, v4, 5, v1
    v_lshrrev_b32 v4, 3, v0
    v_lshlrev_b32 v4, 12, v4
    v_lshl_add_u32 v14, v3, 4, v4
    s_lshl_b32 s32, s6, 15
    s_lshr_b32 s33, s3, 1
    s_lshl_b32 s33, s33, 13
    s_add_u32 s34, s32, s33
    s_and_b32 s33, s3, 1
    s_lshl_b32 s33, s33, 9
    s_add_u32 s68, s34, s33
    s_lshl_b32 s32, s6, 7
    s_lshl_b32 s33, s3, 15
    s_add_u32 s35, s32, s33
    s_lshl_b32 s33, s3, 13
    s_add_u32 s33, s33, {KST}
    s_waitcnt lgkmcnt(0)
    s_add_u32 s8, s38, s31
    s_addc_u32 s9, s39, 0
    s_mov_b32 s10, 0x100000
    s_mov_b32 s11, 0x20000
    s_add_u32 s12, s40, s31
    s_addc_u32 s13, s41, 0
    s_mov_b32 s14, 0x100000
    s_mov_b32 s15, 0x20000""")
    a.vm_reset()
    kslot = lambda t: 32 + 16*(t if t < 6 else t - 2)
    nk = [0]
    korder = ([(t, 3) for t in range(8)] + [(t, j) for t in range(8) for j in range(3)]) if kslow else [(t, j) for t in range(8) for j in range(4)]
    def kload(t, j, dk):
        if t >= 6: a(f"s_add_u32 m0, s33, {(t-6)*4096 + j*(1024-128)}")
        dd = max(dk, d0) if (kslow and nk[0] < 8) else dk
        if nk[0] >= int(dd): a.vm_pace(dd)
        if t < 6: a.vmem(f"buffer_load_dwordx4 {vr(kslot(t)+4*j)}, v1, s[8:11], s{68+t} offen offset:{j*128} {pol}", f"k{t}")
        else: a.vmem(f"buffer_load_dwordx4 v1, s[8:11], s{68+t} offen offset:{j*128} {pol} lds", f"k{t}")
        mark(nk[0])
        nk[0] += 1
    def kmm(t):
        if t < 6: a.vm_wait(f"k{t}")
        D = 4 + 4*(t & 1)
        for j in range(4): a(f"v_mfma_f32_16x16x32_bf16 {vr(D)}, {vr(16+4*j)}, {vr(kslot(t)+4*j)}, {vr(D) if j else 0}")
    def kfin(t):
        D = 4 + 4*(t & 1); up = t & 1
        for h in range(2):
            dst = (SO0, SO1)[h] if up else f"v{12+h}"
            a(f"v_add_f32_dpp {dst}, v{D+h+(0 if up else 2)}, v{D+h+(2 if up else 0)} quad_perm:{'[0,0,2,2]' if up else '[1,1,3,3]'} row_mask:{1<<(t>>1):#x} bank_mask:0xf")
    SO0, SO1 = "v1", "v15"
    for t in range(1, 8): a(f"s_add_u32 s{68+t}, s68, {t*4*32768}")
    a("s_cmp_eq_u32 s28, 1\ns_cbranch_scc1 L_st_hp")
    for n, (t, j) in enumerate(korder):
        kload(t, j, dk)
        if n == int(dk) - 1:
            pro_roles(); a("s_barrier")
            if dkq is not None:
                a("s_cmp_lg_u32 s79, 0\ns_cbranch_scc1 L_st_q"); sv_vm, sv_n = list(a.vm), nk[0]
    if dkq is not None:
        a("s_branch L_st_kdone\nL_st_q:")
        a.vm = sv_vm; nk[0] = sv_n
        for t, j in korder[sv_n:]: kload(t, j, dkq)
    a("s_branch L_st_kdone\nL_st_hp:\ns_mov_b32 s79, 1\ns_barrier")
    lds_spin(CRIT, 7)
    a.vm_reset(); nk[0] = 0
    for t, j in korder: kload(t, j, dkp)
    a("L_st_kdone:")
    if yprio: a("s_cmp_ge_u32 s3, 4\ns_cbranch_scc0 L_st_old\ns_setprio 1\nL_st_old:")
    ws_srd()
    stamp(1)
    lds_spin(FQ, 1)
    stamp(2)
    a(f"""v_and_b32 v3, 1, v0
    v_lshlrev_b32 v3, 9, v3
    v_bfe_u32 v4, v0, 1, 1
    v_lshl_add_u32 v3, v4, 4, v3
    v_lshrrev_b32 v4, 4, v0
    v_lshl_add_u32 v3, v4, 5, v3""")
    for j in range(4): a(f"ds_read_b128 {vr(16+4*j)}, v3 offset:{QL+j*128}")
    a("s_waitcnt lgkmcnt(0)")
    a("s_mov_b32 s72, s35")
    for r in range(1, 4): a(f"s_add_u32 s{72+r}, s35, {r*8*32768}")
    kmm(2); kmm(3); kfin(2)
    vreg = lambda r: {0: 64, 1: 32, 2: 32, 3: 64}[r]
    def vphase(d, slowfirst):
        vm0 = list(a.vm); nv = [0]
        def vload(r, i):
            if r == 2: a(f"s_add_u32 m0, s101, {i*512}")
            a.vm_pace(d if r < 3 else max(d, dlast))
            if r == 2: a.vmem(f"buffer_load_dwordx4 v14, s[12:15], s{72+r} offen offset:{i*512} {pol} lds", f"v{r}")
            else: a.vmem(f"buffer_load_dwordx4 {vr(vreg(r)+4*i)}, v14, s[12:15], s{72+r} offen offset:{i*512} {pol}", f"v{r}")
            if r == 3 and i == viss: lds_inc(VISS)
            mark(32 + nv[0]); nv[0] += 1
        def publish0():
            a(f"""s_mov_b32 s30, 0xaaaaaaaa
            s_mov_b32 s31, 0xaaaaaaaa
            v_cndmask_b32 v12, v12, {SO0}, s[30:31]
            v_cndmask_b32 v13, v13, {SO1}, s[30:31]
            v_lshlrev_b32 v15, 4, v0
            v_add_u32 v15, s101, v15
            v_cvt_pk_bf16_f32 v96, v12, v13
            s_lshl_b32 s30, s5, 3
            s_add_u32 s30, s30, s4
            s_lshl_b32 s31, s6, 3
            s_add_u32 s31, s31, s3
            v_min_u32 v96, -2, v96
            s_lshl_b32 s32, s30, 13
            s_lshl_b32 s33, s31, 8
            s_add_u32 s32, s32, s33
            s_add_u32 s32, s32, {SC_OFF}
            v_and_b32 v3, 0x30, v0
            v_and_b32 v97, 1, v0
            v_lshl_add_u32 v3, v97, 3, v3
            v_bfe_u32 v97, v0, 1, 3
            v_add_lshl_u32 v3, v3, v97, 2""")
            a.vmem(f"buffer_store_dword v96, v3, {WS}, s32 offen sc1")
            unpack2("v12", "v13", "v96")
            a("v_mov_b32 v100, v12\nv_mov_b32 v101, v13\nv_permlane32_swap_b32 v100, v101\nv_max_f32 v100, v100, v101")
            row_reduce("v_max_f32", "v100")
            a(f"""v_mov_b32 v3, v100
            v_permlane16_swap_b32 v3, v100
            v_max_f32 v100, v100, v3
            v_mov_b32 v102, v100
            v_permlane32_swap_b32 v100, v102
            s_lshl_b32 s32, s30, 9
            s_lshl_b32 s33, s31, 4
            s_add_u32 s32, s32, s33
            s_add_u32 s32, s32, {ST_OFF}
            v_sub_f32 v101, v12, v100
            v_sub_f32 v103, v13, v102
            v_mul_f32 v101, {CEXP}, v101
            v_mul_f32 v103, {CEXP}, v103
            v_exp_f32 v101, v101
            v_exp_f32 v103, v103
            v_permlane32_swap_b32 v101, v103
            v_add_f32 v101, v101, v103""")
            row_reduce("v_add_f32", "v101")
            a("""v_mov_b32 v3, v101
            v_permlane16_swap_b32 v3, v101
            v_add_f32 v101, v101, v3
            v_mov_b32 v103, v101
            v_permlane32_swap_b32 v101, v103
            s_mov_b64 exec, 1""")
            a.vmem(f"buffer_store_dwordx4 v[100:103], v2, {WS}, s32 offen sc1")
            a(f"v_mov_b32 v3, 1\nds_add_u32 v2, v3 offset:{KDONE}\ns_mov_b64 exec, -1")
            stamp(3)
        def zero_a():
            for k in range(16, 32): a(f"v_mov_b32 v{k}, 0")
        def softmax():
            lds_spin(FP, 1)
            stamp(4)
            a(f"""v_lshrrev_b32 v3, 4, v0
            v_bfe_u32 v4, v0, 1, 1
            v_lshlrev_b32 v3, 9, v3
            v_lshl_add_u32 v3, v4, 4, v3
            v_bfe_u32 v4, v0, 2, 2
            v_lshl_add_u32 v3, v4, 6, v3
            s_and_b32 s30, s3, 3
            s_lshl_b32 s30, s30, 11
            s_lshr_b32 s31, s3, 2
            s_lshl_b32 s31, s31, 5
            s_add_u32 s30, s30, s31
            v_add_u32 v3, s30, v3
            ds_read_b128 v[108:111], v3 offset:{SCL}
            ds_read_b128 v[112:115], v3 offset:{SCL+256}
            v_and_b32 v4, 1, v0
            v_lshlrev_b32 v5, 3, v4
            ds_read_b64 v[116:117], v5 offset:{MS}
            v_mul_u32_u24 v4, 0x0202, v4
            v_lshlrev_b32 v4, 16, v4
            v_add_u32 v4, 0x05040c0c, v4
            s_waitcnt lgkmcnt(0)""")
            for i in range(8): a(f"v_perm_b32 v{108+i}, v{108+i}, v{108+i}, v4")
            for i in range(8): a(f"v_fma_f32 v{108+i}, v{108+i}, {CEXP}, -v116")
            for i in range(8): a(f"v_exp_f32 v{108+i}, v{108+i}")
            for i in range(8): a(f"v_mul_f32 v{108+i}, v{108+i}, v117")
            for k in range(4): a(f"v_cvt_pk_bf16_f32 v{96+k}, v{108+k}, v{112+k}")
        def amake(r):
            for jj in range(4):
                n = (4*(jj - r)) % 16
                for k in range(4):
                    a(f"v_mov_b32_dpp v{16+4*jj+k}, v{96+k} " + (f"row_ror:{n}" if n else "quad_perm:[0,1,2,3]") + f" row_mask:0xf bank_mask:{1<<jj:#x}")
        def pv(r, js):
            R = vreg(r)
            for j in js:
                T = 108 + 4*(j & 3)
                for i2 in range(4): a(f"v_perm_b32 v{T+i2}, v{R+8*i2+4+(j>>1)}, v{R+8*i2+(j>>1)}, {SELHI if j & 1 else SELLO}")
                D = 100 + 4*(j >> 2)
                a(f"v_mfma_f32_16x16x32_bf16 {vr(D)}, {vr(16+4*(j&3))}, {vr(T)}, {vr(D) if (r or j & 3) else 0}")
        if slowfirst: order = [(r, i) for par in (0, 1) for r in range(3) for i in range(par, 8, 2)]
        else: order = [(r, i) for r in range(3) for i in range(8)]
        assert d <= 8
        todo = [softmax, lambda: (amake(0), a.vm_wait("v0"), pv(0, range(0, 3))), lambda: pv(0, range(3, 8))]
        for n, (r, i) in enumerate(order):
            vload(r, i)
            if n == 0:
                kmm(0); kfin(3); kmm(1); kfin(0)
                a("s_mov_b32 s101, s33")
            if n == 1: kmm(4); kfin(1); kmm(5); kfin(4)
            if n == 2:
                kfin(5); a("v_lshlrev_b32 v3, 4, v0\nv_add_u32 v3, s33, v3"); a.vm_wait("k7")
                for k in range(8): a(f"ds_read_b128 {vr(96+4*k)}, v3 offset:{k*1024}")
                a("s_waitcnt lgkmcnt(4)"); kmm(6); a("s_waitcnt lgkmcnt(0)"); kmm(7); kfin(6); kfin(7)
                if not split: publish0()
            if n == 3 and split: publish0()
            if n == 5: zero_a()
            if trig and n == trig: lds_inc(TRIG)
            if n >= 16 + pw and todo: todo.pop(0)()
        while todo: todo.pop(0)()
        def get2():
            a.vm_wait("v2")
            for k in range(8): a(f"ds_read_b128 {vr(32+4*k)}, v15 offset:{k*1024}")
            amake(2); a("s_waitcnt lgkmcnt(0)")
        todo = [lambda: (amake(1), a.vm_wait("v1"), pv(1, range(0, 4))), lambda: pv(1, range(4, 8)), None, get2, lambda: pv(2, range(0, 4)), lambda: pv(2, range(4, 8))]
        if dlast >= 8:
            for i in range(8): vload(3, i)
            for f in todo:
                if f: f()
        else:
            for i in range(8):
                vload(3, i)
                if todo:
                    f = todo.pop(0)
                    if f: f()
        a.vm = vm0
    a("s_cmp_eq_u32 s6, 3\ns_cbranch_scc1 L_v3")
    if dvhp is not None:
        a("s_cmp_lg_u32 s79, 0\ns_cbranch_scc1 L_vhp")
    vphase(dv, False); a("s_branch L_vlast")
    if dvhp is not None:
        a("L_vhp:"); vphase(dvhp, False); a("s_branch L_vlast")
    a("L_v3:"); vphase(dv3, vslow)
    a("L_vlast:\ns_nop 1")
    roles()
    srd(16, 50, 448*3584); block_voff("v1", 3584)
    a(f"""s_min_u32 s30, s3, 6
    s_mul_i32 s100, s30, {64*3584}
    s_lshl_b32 s30, s7, 7
    s_add_u32 s100, s100, s30
    s_cmp_eq_u32 s3, 7
    s_cselect_b32 s18, 0, s18
    s_cmp_eq_u32 s28, 2
    s_cselect_b32 s18, 0, s18""")
    for jj in range(4):
        n = (4*(jj - 3)) % 16
        for k in range(4):
            a(f"v_mov_b32_dpp v{16+4*jj+k}, v{96+k} " + (f"row_ror:{n}" if n else "quad_perm:[0,1,2,3]") + f" row_mask:0xf bank_mask:{1<<jj:#x}")
    a("v_lshlrev_b32 v3, 3, v0")
    a("L_st_tail:")
    for i2 in range(4):
        a(f"s_waitcnt vmcnt({6-2*i2})")
        if i2 == 0: mark(67)
        if i2 == 3: mark(65)
        for j in range(8): a(f"v_perm_b32 v{32+4*j+i2}, v{64+8*i2+4+(j>>1)}, v{64+8*i2+(j>>1)}, {SELHI if j & 1 else SELLO}")
    for j in (0, 4, 1, 5, 2, 6, 3, 7):
        D = 100 + 4*(j >> 2)
        a(f"v_mfma_f32_16x16x32_bf16 {vr(D)}, {vr(16+4*(j&3))}, {vr(32+4*j)}, {vr(D)}")
    for h in range(2): a(f"v_add_f32_dpp v{108+h}, v{102+h}, v{100+h} row_ror:8 row_mask:0xf bank_mask:0x3")
    for h in range(2): a(f"v_add_f32_dpp v{108+h}, v{104+h}, v{106+h} row_ror:8 row_mask:0xf bank_mask:0xc")
    mark(66)
    for h in range(2): a(f"v_cvt_f64_f32 v[{112+2*h}:{113+2*h}], v{108+h}\nds_add_f64 v3, v[{112+2*h}:{113+2*h}] offset:{OACC+h*512}")
    a("s_waitcnt lgkmcnt(0)")
    stamp(5)
    mark(64)
    guard("s_barrier")
    Ls = a.label("up")
    if dry: a(f"s_cbranch_execz {Ls}")
    a("s_cmp_eq_u32 s28, 2\ns_cbranch_scc1 L_st_end\ns_cmp_eq_u32 s3, 7\ns_cbranch_scc1 L_st_end")
    load_block(W1, "v1", 16, "s100", 3584)
    a(f"{Ls}:")
    g_prep()
    if not dry: a("s_setprio 3")
    else: guard("s_setprio 3")
    g_stage()
    if dry: a("s_cbranch_execz L_svc_tail")
    a("L_st_end:"); finish()

    a.raw(".p2align 9")
    a("L_notstream:")
    mode['stream'] = False
    pro_roles()
    a("s_cmp_eq_u32 s3, 15\ns_cbranch_scc1 L_comm\ns_sub_u32 s3, s3, 8\ns_cmp_eq_u32 " + ("s28" if coop else "s79") + ", 1\ns_cbranch_scc0 L_svc_nh")
    block_voff("v1", 5376)
    a(f"s_mul_i32 s34, s3, {64*5376}\ns_lshl_b32 s30, s29, 7\ns_add_u32 s34, s34, s30\ns_setprio 2\ns_waitcnt lgkmcnt(0)")
    srd(68, 56, 448*5376)
    a.vm_reset()
    load_block(W2, "v1", 68, "s34", 5376, tag="wm")
    a("L_svc_nh:\ns_barrier\ns_waitcnt lgkmcnt(0)")
    ws_srd(); roles()
    a(f"""
    s_cmp_eq_u32 s79, 0
    s_cbranch_scc1 L_svc_w
    v_lshrrev_b32 v3, 4, v0
    v_lshlrev_b32 v3, 1, v3
    v_and_b32 v4, 1, v0
    v_add_u32 v3, v3, v4
    v_lshlrev_b32 v6, 4, v3
    s_lshl_b32 s30, s3, 7
    v_add_u32 v6, s30, v6
    v_bfe_u32 v7, v0, 1, 3
    v_lshlrev_b32 v31, 4, v0
    v_mul_u32_u24 v30, 896, v7
    v_add_u32 v30, v30, v6
    s_setprio 2
    s_cmp_eq_u32 s79, 2
    s_cbranch_scc1 L_svc_P
    """)
    def gw(tag):
        if warm:
            L = a.label("gw"); a(f"s_cbranch_execz {L}"); a.vm_wait(tag); a(f"{L}:")
        else: a.vm_wait(tag)
    def seg(name, ret):
        if warm: a(f"s_cbranch_execz {ret}\n{name}:")
    def warmup(entries, ret):
        if not warm: return
        a(f"s_cmp_ge_u32 s3, {len(entries)}\ns_cbranch_scc1 {ret}\ns_mov_b64 exec, 0")
        for k, e in enumerate(entries[:-1]): a(f"s_cmp_eq_u32 s3, {k}\ns_cbranch_scc1 {e}")
        a(f"s_branch {entries[-1]}\n{ret}:\ns_nop 7\ns_mov_b64 exec, -1")
    def gemv8_publish(Wb, Db, rowstride, off, p):
        for j in range(8): a(f"v_mfma_f32_16x16x32_bf16 {vr(Db+4*j)}, v[12:15], {vr(Wb+4*j)}, 0")
        a(f"s_lshl_b32 s30, s3, 11\nv_add_u32 v3, s30, v31")
        for half in range(2):
            for j in range(8):
                D = Db + 4*j
                if half == 0: a(f"v_add_f32_dpp v{16+j}, v{D+1}, v{D} row_ror:8 row_mask:0xf bank_mask:0x3")
                else: a(f"v_add_f32_dpp v{16+j}, v{D+2}, v{D+3} row_ror:8 row_mask:0xf bank_mask:0xc")
        a(f"""ds_write_b128 v3, v[16:19] offset:{RED}
        ds_write_b128 v3, v[20:23] offset:{RED+1024}
        v_mov_b32 v3, 1
        s_waitcnt lgkmcnt(0)""")
        seg(f"{p}_sX", f"{p}_ret")
        a(f"s_mov_b64 exec, 1\nds_add_u32 v2, v3 offset:{RC0}\ns_mov_b64 exec, -1\ns_cmp_lg_u32 s3, 0\ns_cbranch_scc1 {p}_done")
        a(f"v_lshrrev_b32 v4, 3, v0\nv_mul_u32_u24 v4, {rowstride}, v4\nv_and_b32 v5, 7, v0\nv_lshl_add_u32 v4, v5, 4, v4")
        lds_spin(RC0, 7, nap=False); stamp(7)
        if warm: a(f"{p}_sR:")
        for w in range(7):
            a(f"ds_read_b128 {vr(W0+8*w)}, v31 offset:{RED+w*2048}\nds_read_b128 {vr(W0+8*w+4)}, v31 offset:{RED+w*2048+1024}")
        a(f"s_lshl_b32 s33, s29, 7\ns_add_u32 s33, s33, {off}\ns_add_u32 s32, s33, {DUAL}")
        for w, n in ((1, 10), (3, 6), (5, 2)):
            a(f"s_waitcnt lgkmcnt({n})")
            for j in range(0, 8, 2): a(f"v_pk_add_f32 v[{W0+8*(w-1)+j}:{W0+8*(w-1)+j+1}], v[{W0+8*(w-1)+j}:{W0+8*(w-1)+j+1}], v[{W0+8*w+j}:{W0+8*w+j+1}]")
        a("s_waitcnt lgkmcnt(0)")
        for x, y in ((0, 2), (4, 6), (0, 4)):
            for j in range(0, 8, 2): a(f"v_pk_add_f32 v[{W0+8*x+j}:{W0+8*x+j+1}], v[{W0+8*x+j}:{W0+8*x+j+1}], v[{W0+8*y+j}:{W0+8*y+j+1}]")
        for d in range(4): a(f"v_cvt_pk_bf16_f32 v{24+d}, v{W0+2*d}, v{W0+2*d+1}")
        for d in range(4): a(f"v_xor_b32 v{16+d}, {TAG}, v{24+d}")
        seg(f"{p}_sY", f"{p}_ret")
        a(f"buffer_store_dwordx4 v[24:27], v4, {WS}, s33 offen sc1\nbuffer_store_dwordx4 v[16:19], v4, {WS}, s32 offen sc1\n{p}_done:")

    if coop:
        a("s_cmp_eq_u32 s28, 1\ns_cbranch_scc1 L_svc_H")
        block_voff("v1", 5376)
        a(f"s_mul_i32 s34, s3, {64*5376}\ns_lshl_b32 s30, s29, 7\ns_add_u32 s34, s34, s30")
        srd(68, 56, 448*5376)
        lds_spin(F1, 1)
        vm0 = list(a.vm); load_block(W2, "v1", 68, "s34", 5376, pace=dq); a.vm = vm0
        a("L_svc_H:")
    srd(8, 54, 7168)
    a.vmem(f"buffer_load_dwordx4 v[8:11], v30, s[8:11], 0 offen", "c")
    tag_load()
    if 'hst' in exp: stamp(2)
    lds_inc(CRIT)
    warmup(["H_s0", "H_s1", "H_s2", "H_sR"], "H_ret")
    if warm: a("H_s0:")
    gw("c")
    for d in range(4): unpack2(f"v{16+2*d}", f"v{17+2*d}", f"v{8+d}")
    T = lambda i: 24+i if i < 4 else 4+i
    for i in range(8): a(f"v_mul_f32 v{T(i)}, {f32(-math.log2(math.e))}, v{16+i}")
    for i in range(8): a(f"v_exp_f32 v{T(i)}, v{T(i)}")
    for i in range(8): a(f"v_add_f32 v{T(i)}, 1.0, v{T(i)}")
    for i in range(8): a(f"v_rcp_f32 v{T(i)}, v{T(i)}")
    for i in range(8): a(f"v_mul_f32 v{16+i}, v{16+i}, v{T(i)}")
    for d in range(4): a(f"v_cvt_pk_bf16_f32 v{12+d}, v{16+2*d}, v{17+2*d}")
    seg("H_sT", "H_ret")
    tag_wait(); lds_inc(TAGC)
    if warm: a("H_s1:")
    if 'hst' in exp: stamp(4)
    transpose_inplace(W2)
    seg("H_s2", "H_ret")
    gemv8_publish(W2, W1, 5376, MOD_OFF, "H")
    stamp(1)
    if 'hst' in exp: a("s_waitcnt lgkmcnt(0)\ns_mov_b32 s76, s86\ns_mov_b32 s77, s88\ns_mov_b32 s83, s94")
    a("s_branch L_svc_w")

    a("L_svc_P:")
    a.vm_reset()
    srd(72, 42, 448*8192); srd(96, 36, 7168)
    a.vmem("buffer_load_dwordx4 v[8:11], v30, s[96:99], 0 offen", "x")
    tag_load()
    block_voff("v1", 8192)
    a(f"s_mul_i32 s34, s3, {64*8192}\ns_lshl_b32 s30, s29, 7\ns_add_u32 s34, s34, s30")
    if coop:
        tag_wait(); lds_inc(TAGC); lds_spin(F1, 1)
        load_block(W2, "v1", 72, "s34", 8192, tag="q0", pace=dq)
    else:
        load_block(W2, "v1", 72, "s34", 8192, tag="q0", pace=dq)
        tag_wait(); lds_inc(TAGC)
    def red8(v):
        a(f"v_add_f32_dpp {v}, {v}, {v} quad_perm:[1,0,3,2] row_mask:0xf bank_mask:0xf")
        xrow_reduce("v_add_f32", v, "v3")
    for d in range(4): unpack2(f"v{16+2*d}", f"v{17+2*d}", f"v{8+d}")
    a("v_add_f32 v24, v16, v17")
    for i in range(2, 8): a(f"v_add_f32 v24, v24, v{16+i}")
    red8("v24")
    a(f"v_mul_f32 v24, {f32(1/64)}, v24\nv_mov_b32 v25, 0")
    for i in range(8): a(f"v_sub_f32 v3, v{16+i}, v24\nv_fmac_f32 v25, v3, v3")
    red8("v25")
    a(f"""s_lshl_b32 s30, s3, 3
    v_lshlrev_b32 v26, 6, v7
    v_add_u32 v3, s30, v26
    ds_write_b64 v3, v[24:25] offset:{XST}
    v_lshrrev_b32 v3, 4, v0
    v_and_b32 v4, 1, v0
    v_lshl_add_u32 v27, v3, 1, v4
    v_lshl_add_u32 v26, v27, 3, v26
    v_cmp_gt_u32 vcc, 7, v27
    v_mov_b32 v4, {f32(64.0)}
    v_cndmask_b32 v27, 0, v4, vcc
    s_waitcnt lgkmcnt(0)""")
    lds_inc(XC); lds_spin(XC, 7, nap=False)
    a(f"ds_read_b64 v[28:29], v26 offset:{XST}\ns_waitcnt lgkmcnt(0)\nv_mov_b32 v24, v28")
    red8("v24")
    a(f"v_mul_f32 v24, {f32(1/7)}, v24\nv_sub_f32 v28, v28, v24\nv_mul_f32 v28, v28, v28\nv_fma_f32 v25, v28, v27, v29")
    red8("v25")
    a(f"v_mul_f32 v25, {f32(1/448)}, v25")
    round2("v24", "v25", "v3")
    a(f"v_add_f32 v25, {f32(1e-5)}, v25"); round1("v25")
    a("v_sqrt_f32 v25, v25"); round1("v25")
    a("v_rcp_f32 v25, v25")
    for i in range(8): a(f"v_sub_f32 v{16+i}, v{16+i}, v24")
    for d in range(4): round2(f"v{16+2*d}", f"v{17+2*d}", "v3")
    for i in range(8): a(f"v_mul_f32 v{16+i}, v{16+i}, v25")
    for d in range(4): a(f"v_cvt_pk_bf16_f32 v{8+d}, v{16+2*d}, v{17+2*d}")
    warmup(["Q_s0", "Q_s2", "Q_sR"], "Q_ret")
    a.vm_wait("q0"); transpose_inplace(W2)
    stamp(5)
    if ssa: sprobe(f"s_lshl_b32 s30, s3, 7\ns_add_u32 s30, s30, {MOD_OFF+7*5376}", [0, 896], [12, 13, 14, 15])
    stamp(6)
    a(f"v_mul_u32_u24 v30, 5376, v7\nv_add_u32 v30, v30, v6\ns_mov_b32 s32, {DUAL}")
    poll_dual([f"buffer_load_dwordx4 v[16:19], v30, {WS}, 0 offen offset:{MOD_OFF} sc1",
               f"buffer_load_dwordx4 v[20:23], v30, {WS}, 0 offen offset:{MOD_OFF+896} sc1",
               f"buffer_load_dwordx4 {vr(W0)}, v30, {WS}, s32 offen offset:{MOD_OFF} sc1",
               f"buffer_load_dwordx4 {vr(W0+4)}, v30, {WS}, s32 offen offset:{MOD_OFF+896} sc1"],
              [(16+k, W0+k) for k in range(8)])
    stamp(1)
    if warm: a("Q_s0:")
    for d in range(4):
        unpack2("v28", "v29", f"v{20+d}")
        a("v_add_f32 v28, 1.0, v28\nv_add_f32 v29, 1.0, v29"); round2("v28", "v29", "v3")
        unpack2("v24", "v25", f"v{8+d}")
        a("v_mul_f32 v24, v24, v28\nv_mul_f32 v25, v25, v29"); round2("v24", "v25", "v3")
        unpack2("v28", "v29", f"v{16+d}")
        a(f"v_add_f32 v24, v24, v28\nv_add_f32 v25, v25, v29\nv_cvt_pk_bf16_f32 v{12+d}, v24, v25")
    seg("Q_s2", "Q_ret")
    gemv8_publish(W2, W1, 8192, Q_OFF, "Q")
    stamp(2)

    a(f"L_svc_w:\ns_setprio {sprio}\ns_waitcnt vmcnt(0)")
    a.vm_reset()
    srd(8, 44, 4096*896); srd(12, 52, 1792*896); srd(16, 48, 448*3584)
    if 'contig' in exp: block_voff("v1", 128); block_voff("v8", 128)
    else: block_voff("v1", 896); block_voff("v8", 3584)
    S896, S3584 = (128, 128) if 'contig' in exp else (896, 3584)
    if 'now' in exp: a("s_branch L_svc_rdy")
    if wpre: lds_spin(FC, 1)
    a(f"""s_lshl_b32 s30, s4, 9
    s_lshl_b32 s31, s6, 6
    s_add_u32 s30, s30, s31
    s_mul_i32 s34, s30, 896
    s_lshl_b32 s31, s3, 7
    s_add_u32 s34, s34, s31
    s_add_u32 s35, s34, {256*896}
    s_mul_i32 s100, s7, {64*896}
    s_add_u32 s100, s100, s31""")
    if 'contig' in exp: a("s_lshl_b32 s30, s4, 2\ns_add_u32 s30, s30, s6\ns_mul_i32 s34, s30, 114688\ns_lshl_b32 s30, s3, 14\ns_add_u32 s34, s34, s30\ns_add_u32 s35, s34, 8192\ns_mul_i32 s100, s7, 57344\ns_lshl_b32 s30, s3, 13\ns_add_u32 s100, s100, s30")
    a("s_mov_b32 s77, 0\ns_cmp_eq_u32 s28, 2\ns_cbranch_scc0 L_svc_mlp")
    load_block(W0, "v1", 8, "s34", S896, pace=dwp, tag="wo0", ff=fastfin)
    load_block(W1, "v1", 8, "s35", S896, pace=dwp, tag="wo1", ff=fastfin, fill={min(int(dwp+0.99), 7): lambda: (a.vm_wait("wo0"), transpose_inplace(W0))})
    a.vm_wait("wo1"); transpose_inplace(W1)
    a("s_branch L_svc_rdy\nL_svc_mlp:")
    a.vm_reset()
    load_block(W0, "v1", 8, "s34", S896, pace=dw, tag="wo0", ff=fastfin)
    load_block(W1, "v1", 8, "s35", S896, pace=dw, tag="wo1", ff=fastfin, fill={int(dw+0.99): lambda: (a.vm_wait("wo0"), transpose_inplace(W0))})
    a(f"""s_mul_i32 s101, s3, {64*3584}
    s_lshl_b32 s30, s7, 7
    s_add_u32 s101, s101, s30
    s_lshl_b32 s33, s3, 13
    s_add_u32 s33, s33, {GU}""")
    dma_block("s33", "v8", 16, "s101", S3584, pace=dw, tag="wg", ff=fastfin, fill={int(dw+0.99): lambda: (a.vm_wait("wo1"), transpose_inplace(W1))})
    load_block(W2, "v1", 12, "s100", S896, pace=dw, tag="wd", ff=fastfin)
    a.vm_wait("wg")
    a("L_svc_rdy:")
    a(f"""v_lshrrev_b32 v3, 4, v0
    v_and_b32 v4, 1, v0
    v_lshl_add_u32 v4, v3, 1, v4
    v_bfe_u32 v5, v0, 1, 1
    v_lshlrev_b32 v5, 5, v5
    v_add_u32 v9, v4, v5
    v_bfe_u32 v5, v0, 2, 1
    v_lshl_add_u32 v9, v5, 3, v9
    v_lshlrev_b32 v9, 3, v9
    v_and_b32 v5, 7, v0
    v_lshlrev_b32 v5, 5, v5
    v_lshrrev_b32 v11, 5, v0
    v_lshl_add_u32 v11, v11, 4, v5
    s_lshl_b32 s30, s5, 5
    s_lshl_b32 s31, s4, 2
    s_add_u32 s31, s31, s6
    s_add_u32 s31, s31, s30
    s_mul_i32 s34, s31, 1792
    s_lshl_b32 s33, s3, 8
    s_add_u32 s34, s34, s33
    s_add_u32 s34, s34, {PA_OFF}
    s_mul_i32 s35, s30, 1792
    s_add_u32 s35, s35, s33
    s_add_u32 s35, s35, {PA_OFF}
    s_mul_i32 s100, s5, 28
    s_add_u32 s100, s100, s7
    s_mul_i32 s100, s100, 1792
    s_add_u32 s100, s100, s33
    s_add_u32 s100, s100, {PD_OFF}
    v_mul_u32_u24 v1, 1792, v3
    v_and_b32 v4, 15, v0
    v_lshl_add_u32 v1, v4, 4, v1
    v_lshl_add_u32 v8, v4, 2, v3
    s_lshl_b32 s30, s3, 6
    v_add_u32 v8, s30, v8""")
    for r in range(1, 8): a(f"s_add_u32 s{68+r}, s35, {r*4*1792}")
    a("s_mov_b32 s68, s35")
    stamp(3)
    a("s_setprio 3\nL_svc_tail:")
    guard("s_barrier")
    if 'tst' in exp: stamp(1)
    a(f"""ds_read2_b64 v[20:23], v9 offset0:{OACC//8} offset1:{OACC//8+16}
    ds_read2_b64 v[24:27], v9 offset0:{OACC//8+64} offset1:{OACC//8+80}
    s_waitcnt lgkmcnt(1)
    v_cvt_f32_f64 v20, v[20:21]
    v_cvt_f32_f64 v22, v[22:23]
    s_waitcnt lgkmcnt(0)
    v_cvt_f32_f64 v24, v[24:25]
    v_cvt_pk_bf16_f32 v12, v20, v22
    v_cvt_f32_f64 v26, v[26:27]
    v_cvt_pk_bf16_f32 v16, v24, v26""")
    for A0 in (12, 16):
        for d in range(1, 4): a(f"v_mov_b32_dpp v{A0+d}, v{A0} row_ror:{16-2*d} row_mask:0xf bank_mask:0xf")
    if 'tst' in exp: stamp(3)
    for j in range(8): a(f"v_mfma_f32_16x16x32_bf16 {vr(W0+4*j)}, v[12:15], {vr(W0+4*j)}, 0")
    for j in range(8): a(f"v_mfma_f32_16x16x32_bf16 {vr(W0+4*j)}, v[16:19], {vr(W1+4*j)}, {vr(W0+4*j)}")
    for j in range(8): a(f"v_add_f32_dpp v{20+(j&3)}, v{W0+4*j+1}, v{W0+4*j} row_ror:8 row_mask:{1<<(2*(j>>2)):#x} bank_mask:0x3")
    if 'tst' in exp: stamp(2)
    guard(setexec(0x000000FF000000FF) + f"\nbuffer_store_dwordx4 v[20:23], v11, {WS}, s34 offen sc1\ns_mov_b64 exec, -1")
    stamp(4)
    Lp = a.label("notP")
    if dry: a(f"s_cbranch_execz {Lp}")
    a(f"s_cmp_lg_u32 s28, 2\ns_cbranch_scc1 {Lp}"); finish(); a(f"{Lp}:")
    g1 = lambda r: f"buffer_load_dwordx4 {vr(W0+4*r)}, v1, {WS}, s{68+r} offen sc1"
    gl = "\n".join(g1(r) for r in range(8))
    guard("s_barrier\n" + gl)
    a(f"""v_lshlrev_b32 v3, 1, v8
    ds_read_u16 v23, v3 offset:{MODL}
    ds_read_u16 v24, v3 offset:{XL}
    v_lshlrev_b32 v25, 2, v8
    v_lshrrev_b32 v26, 5, v0
    v_lshlrev_b32 v26, 2, v26
    s_lshl_b32 s30, s3, 3
    v_add_u32 v26, s30, v26
    v_lshrrev_b32 v12, 4, v0
    v_and_b32 v4, 1, v0
    v_lshl_add_u32 v12, v12, 1, v4
    v_bfe_u32 v4, v0, 1, 2
    v_lshl_add_u32 v12, v4, 4, v12
    v_lshlrev_b32 v12, 3, v12
    v_add_u32 v12, {GUACC}, v12
    s_waitcnt lgkmcnt(0)
    v_lshlrev_b32 v23, 16, v23
    v_lshlrev_b32 v24, 16, v24
    s_mov_b32 s31, 0
    s_waitcnt vmcnt(9)""")
    transpose_inplace(W2)
    L = a.label("pa"); D = a.label("pad")
    a(f"{L}:\ns_waitcnt vmcnt(0)")
    check(range(W0, W0+32), "v3")
    a(f"s_cbranch_vccz {D}\ns_add_u32 s31, s31, 1\ns_cmp_ge_u32 s31, {SPIN_MAX}\ns_cbranch_scc1 {D}")
    if selp:
        for r in range(8):
            K = a.label("ok"); check(range(W0+4*r, W0+4*r+4), "v3")
            a(f"s_cbranch_vccz {K}\n{g1(r)}\n{K}:")
    else: a(gl)
    a(f"s_branch {L}\n{D}:")
    stamp(5)
    for st in (16, 8, 4):
        for k in range(0, st, 2): a(f"v_pk_add_f32 v[{W0+k}:{W0+k+1}], v[{W0+k}:{W0+k+1}], v[{W0+st+k}:{W0+st+k+1}]")
    a(f"""v_permlane32_swap_b32 v{W0}, v{W0+2}
    v_permlane32_swap_b32 v{W0+1}, v{W0+3}
    v_add_f32 v{W0}, v{W0}, v{W0+2}
    v_add_f32 v{W0+1}, v{W0+1}, v{W0+3}
    v_permlane16_swap_b32 v{W0}, v{W0+1}
    v_add_f32 v27, v{W0}, v{W0+1}""")
    round1("v27"); a("v_mul_f32 v27, v27, v23"); round1("v27"); a("v_add_f32 v27, v27, v24"); round1("v27")
    a(f"""ds_write_b32 v25, v27 offset:{X1L}
    v_readfirstlane_b32 s30, v27
    v_subrev_f32 v28, s30, v27
    v_mul_f32 v29, v28, v28
    v_permlane32_swap_b32 v28, v29
    v_add_f32 v28, v28, v29""")
    row_reduce("v_add_f32", "v28")
    a("v_mov_b32 v29, v28\nv_permlane16_swap_b32 v28, v29\nv_add_f32 v28, v28, v29")
    a(f"ds_write_b32 v26, v28 offset:{STL}\ns_waitcnt lgkmcnt(0)")
    guard("s_barrier")
    stamp(7)
    guard("s_barrier")
    a(f"ds_read2_b64 v[24:27], v12 offset0:0 offset1:8\nds_read2_b64 v[28:31], v12 offset0:64 offset1:72\ns_waitcnt lgkmcnt(1)")
    a("v_cvt_f32_f64 v24, v[24:25]\nv_cvt_f32_f64 v25, v[26:27]")
    round2("v24", "v25", "v3")
    a(f"v_mul_f32 v24, {f32(-math.log2(math.e))}, v24\nv_mul_f32 v25, {f32(-math.log2(math.e))}, v25\nv_exp_f32 v24, v24\nv_exp_f32 v25, v25\ns_waitcnt lgkmcnt(0)")
    a("v_cvt_f32_f64 v28, v[28:29]\nv_cvt_f32_f64 v29, v[30:31]")
    a("v_cvt_pk_bf16_f32 v3, v28, v29\nv_add_f32 v24, 1.0, v24\nv_add_f32 v25, 1.0, v25\nv_rcp_f32 v24, v24\nv_rcp_f32 v25, v25")
    unpack2("v28", "v29", "v3"); round2("v24", "v25", "v3")
    a("v_mul_f32 v24, v24, v28\nv_mul_f32 v25, v25, v29\nv_cvt_pk_bf16_f32 v24, v24, v25")
    for d in range(1, 4): a(f"v_mov_b32_dpp v{24+d}, v24 row_ror:{16-2*d} row_mask:0xf bank_mask:0xf")
    for j in range(8): a(f"v_mfma_f32_16x16x32_bf16 {vr(W2+4*j)}, v[24:27], {vr(W2+4*j)}, 0")
    for j in range(8): a(f"v_add_f32_dpp v{28+(j&3)}, v{W2+4*j+1}, v{W2+4*j} row_ror:8 row_mask:{1<<(2*(j>>2)):#x} bank_mask:0x3")
    guard(setexec(0x000000FF000000FF) + f"\nbuffer_store_dwordx4 v[28:31], v11, {WS}, s100 offen sc1\ns_mov_b64 exec, -1")
    stamp(6)
    if dry: a("s_cbranch_execz L_dry2")
    finish()

    mode['stream'] = False
    a(f"""L_comm:
    v_mov_b32 v4, 0
    v_mov_b32 v5, 0
    v_mov_b32 v6, 0
    v_mov_b32 v7, 0
    v_lshlrev_b32 v1, 4, v0
    ds_write_b128 v1, v[4:7]
    ds_write_b128 v1, v[4:7] offset:1024
    ds_write_b128 v1, v[4:7] offset:2048
    s_setprio 3
    s_waitcnt lgkmcnt(0)
    s_barrier""")
    roles(); ws_srd(); tag_load('v12')
    if coop:
        srd(68, 56, 448*5376); srd(72, 42, 448*8192)
        a(f"""s_lshl_b32 s30, s6, 3
        s_add_u32 s30, s30, s5
        s_mul_i32 s30, s30, 14
        v_and_b32 v3, 7, v0
        v_add_u32 v3, s30, v3
        v_lshrrev_b32 v4, 3, v0
        s_cmp_ge_u32 s4, 2
        s_cselect_b32 s31, 6, 2
        s_cselect_b32 s32, 14, 0
        s_add_u32 s32, s32, s4
        v_mul_u32_u24 v5, s31, v4
        v_add_u32 v5, s32, v5
        v_mul_u32_u24 v6, 5376, v3
        v_lshl_add_u32 v6, v5, 7, v6
        v_cmp_gt_u32 vcc, 42, v5
        v_mov_b32 v7, 0x7fffffff
        v_cndmask_b32 v6, v7, v6, vcc
        s_mov_b32 s30, {8*5376}
        buffer_load_dword v25, v6, s[68:71], 0 offen
        buffer_load_dword v26, v6, s[68:71], s30 offen
        s_lshl_b32 s30, s4, 10
        s_add_u32 s31, s30, {8*8192}
        v_lshlrev_b32 v3, 13, v3
        v_lshl_add_u32 v3, v4, 7, v3
        buffer_load_dword v27, v3, s[72:75], s30 offen
        buffer_load_dword v28, v3, s[72:75], s31 offen""")
        if not wpre: a(f"s_waitcnt vmcnt(0)\nv_mov_b32 v3, 1\nds_write_b32 v2, v3 offset:{F1}")
    if wpre:
        srd(8, 44, 4096*896); srd(12, 52, 1792*896); srd(16, 48, 448*3584); srd(20, 50, 448*3584)
        a(f"""v_lshlrev_b32 v3, 7, v0
        s_lshl_b32 s30, s4, 9
        s_lshl_b32 s31, s6, 6
        s_add_u32 s30, s30, s31
        s_lshl_b32 s31, s5, 3
        s_add_u32 s30, s30, s31
        s_mul_i32 s30, s30, 896
        s_add_u32 s32, s30, {256*896}
        s_mov_b32 exec_hi, 0xffffff
        buffer_load_dword v20, v3, s[8:11], s30 offen
        buffer_load_dword v21, v3, s[8:11], s32 offen
        s_cmp_eq_u32 s28, 2
        s_cbranch_scc1 L_c_nopre
        s_lshl_b32 s30, s7, 6
        s_add_u32 s30, s30, s31
        s_mul_i32 s30, s30, 896
        buffer_load_dword v22, v3, s[12:15], s30 offen
        v_mul_u32_u24 v3, 3584, v0
        s_mul_i32 s30, s5, {56*3584}
        s_lshl_b32 s31, s7, 7
        s_add_u32 s30, s30, s31
        buffer_load_dword v23, v3, s[16:19], s30 offen
        buffer_load_dword v24, v3, s[20:23], s30 offen
        s_waitcnt vmcnt(5)
        s_branch L_c_pre2
        L_c_nopre:
        s_waitcnt vmcnt(2)
        L_c_pre2:
        s_mov_b64 exec, -1
        v_mov_b32 v3, 1
        ds_write_b32 v2, v3 offset:{F1}""")
    a(f"""v_mov_b32 v4, -1
    v_mov_b32 v5, -1
    v_mov_b32 v6, -1
    v_mov_b32 v7, -1
    s_lshl_b32 s34, s5, 3
    s_add_u32 s34, s34, s4
    s_lshl_b32 s30, s34, 13
    s_lshl_b32 s31, s6, 11
    s_add_u32 s30, s30, s31
    s_add_u32 s30, s30, {SC_OFF}
    buffer_store_dwordx4 v[4:7], v1, {WS}, s30 offen sc1
    buffer_store_dwordx4 v[4:7], v1, {WS}, s30 offen offset:1024 sc1
    s_lshl_b32 s30, s5, 5
    s_lshl_b32 s31, s4, 2
    s_add_u32 s30, s30, s31
    s_add_u32 s30, s30, s6
    s_mul_i32 s30, s30, 1792
    s_add_u32 s30, s30, {PA_OFF}
    s_mul_i32 s31, s5, 28
    s_add_u32 s31, s31, s7
    s_mul_i32 s31, s31, 1792
    s_add_u32 s31, s31, {PD_OFF}
    s_cmp_eq_u32 s28, 2
    s_cselect_b32 s31, s30, s31
    buffer_store_dwordx4 v[4:7], v1, {WS}, s30 offen sc1
    buffer_store_dwordx4 v[4:7], v1, {WS}, s31 offen sc1
    s_mov_b32 exec_hi, 0xffff
    buffer_store_dwordx4 v[4:7], v1, {WS}, s30 offen offset:1024 sc1
    buffer_store_dwordx4 v[4:7], v1, {WS}, s31 offen offset:1024 sc1
    s_lshl_b32 s30, s34, 9
    s_lshl_b32 s31, s6, 7
    s_add_u32 s30, s30, s31
    s_add_u32 s30, s30, {ST_OFF}
    s_mov_b64 exec, 0xff
    buffer_store_dwordx4 v[4:7], v1, {WS}, s30 offen sc1
    s_mov_b64 exec, 1
    s_lshl_b32 s30, s5, 5
    s_lshl_b32 s31, s4, 2
    s_add_u32 s30, s30, s31
    s_add_u32 s30, s30, s6
    s_lshl_b32 s30, s30, 2
    s_add_u32 s30, s30, {CERT_OFF}""")
    a("s_cmp_eq_u32 s79, 0\ns_cbranch_scc1 L_c_cert")
    lds_spin(TAGC, 7, st="s31")
    a("L_c_cert:\ns_waitcnt vmcnt(0)")
    tag_wait("v12", wait=False)
    a(f"""v_mov_b32 v3, 1
    ds_write_b32 v2, v3 offset:{FC}
    v_mov_b32 v3, {TAG}
    buffer_store_dword v3, v2, {WS}, s30 offen sc1
    s_mov_b64 exec, -1""")
    stamp(1)
    if 'nocomm' in exp: a(f"v_mov_b32 v3, 1\nds_write_b32 v2, v3 offset:{FQ}\nds_write_b32 v2, v3 offset:{FP}\ns_branch L_c_skip")
    if sq and 'noq' not in exp:
        sprobe(f"s_lshl_b32 s30, s5, 13\ns_lshl_b32 s31, s4, 10\ns_add_u32 s30, s30, s31\ns_add_u32 s30, s30, {Q_OFF}", [128*k for k in range(8)], list(range(8, 24)))
    a(f"s_lshl_b32 s30, s5, 13\ns_lshl_b32 s31, s4, 10\ns_add_u32 s30, s30, s31\ns_add_u32 s30, s30, {Q_OFF}\ns_add_u32 s32, s30, {DUAL}")
    if 'noq' not in exp: poll_dual([f"buffer_load_dwordx4 v[12:15], v1, {WS}, s30 offen sc1", f"buffer_load_dwordx4 v[16:19], v1, {WS}, s32 offen sc1"], [(12+k, 16+k) for k in range(4)], cnt="s33")
    a(f"ds_write_b128 v1, v[12:15] offset:{QL}\nv_mov_b32 v3, 1\ns_waitcnt lgkmcnt(0)\nds_write_b32 v2, v3 offset:{FQ}")
    stamp(2)
    a(f"""v_and_b32 v3, 7, v0
    v_lshlrev_b32 v3, 4, v3
    s_lshl_b32 s30, s5, 7
    v_add_u32 v3, s30, v3
    s_cmp_eq_u32 s2, 0
    s_cselect_b64 vcc, -1, 0
    v_cndmask_b32 v10, v3, v1, vcc
    v_mov_b32 v16, 0
    s_mov_b32 s30, {CERT_OFF}""")
    L = a.label("cert"); D = a.label("certd")
    a(f"""s_mov_b32 s33, 0
    {L}:
    buffer_load_dwordx4 v[12:15], v10, {WS}, s30 offen sc1
    s_waitcnt vmcnt(0)
    v_xor_b32 v12, {TAG}, v12
    v_xor_b32 v13, {TAG}, v13
    v_xor_b32 v14, {TAG}, v14
    v_xor_b32 v15, {TAG}, v15
    v_or3_b32 v12, v12, v13, v14
    v_or_b32 v12, v12, v15
    v_cmp_ne_u32 vcc, 0, v12
    s_cbranch_vccz {D}
    s_add_u32 s33, s33, 1
    s_cmp_lt_u32 s33, {SPIN_MAX}
    s_cbranch_scc1 {L}
    {D}:
    s_cmp_lg_u32 s2, 0
    s_cbranch_scc1 L_c_notag
    v_mov_b32 v3, {TAG}
    s_mov_b32 s30, {XN_OFF}
    s_mov_b64 exec, 1
    buffer_store_dword v3, v2, {WS}, s30 offen sc1
    s_mov_b64 exec, -1
    L_c_notag:""")
    stamp(3)
    if 'nodry' in exp: a("s_branch L_dry3")
    if dry: a("s_mov_b64 exec, 0\ns_branch L_st_tail\nL_dry2:\ns_branch L_final\nL_dry3:\ns_nop 7\ns_mov_b64 exec, -1")
    lds_spin(TRIG if trig else KDONE, 8)
    a(f"""s_lshl_b32 s34, s5, 3
    s_add_u32 s34, s34, s4
    s_lshl_b32 s30, s34, 13
    s_add_u32 s30, s30, {SC_OFF}
    s_add_u32 s32, s30, 4096
    s_lshl_b32 s35, s34, 9
    s_add_u32 s35, s35, {ST_OFF}
    v_and_b32 v3, 31, v0
    v_lshlrev_b32 v8, 4, v3""")
    if 'nosc' in exp: pass
    elif probe:
        poll([f"buffer_load_dwordx4 v[12:15], v8, {WS}, s35 offen sc1"], range(12, 16), cnt="s33")
        poll([f"buffer_load_dwordx4 {vr(32+4*k)}, v1, {WS}, {'s30' if k < 4 else 's32'} offen offset:{(k&3)*1024} sc1" for k in range(8)], range(32, 64), cnt="s33")
    else:
        poll([f"buffer_load_dwordx4 v[12:15], v8, {WS}, s35 offen sc1"] +
             [f"buffer_load_dwordx4 {vr(32+4*k)}, v1, {WS}, {'s30' if k < 4 else 's32'} offen offset:{(k&3)*1024} sc1" for k in range(8)],
             list(range(12, 16)) + list(range(32, 64)), cnt="s33")
    stamp(4)
    for k in range(8): a(f"ds_write_b128 v1, {vr(32+4*k)} offset:{SCL+k*1024}")
    a("v_mov_b32 v16, v12\nv_mov_b32 v18, v14")
    for n in (1, 2, 4, 8):
        for v in ("v16", "v18"): a(f"v_max_f32_dpp {v}, {v}, {v} row_ror:{n} row_mask:0xf bank_mask:0xf")
    for v, t in (("v16", "v3"), ("v18", "v4")): a(f"v_mov_b32 {t}, {v}\nv_permlane16_swap_b32 {t}, {v}\nv_max_f32 {v}, {v}, {t}")
    a(f"""v_sub_f32 v12, v12, v16
    v_sub_f32 v14, v14, v18
    v_mul_f32 v12, {CEXP}, v12
    v_mul_f32 v14, {CEXP}, v14
    v_exp_f32 v12, v12
    v_exp_f32 v14, v14
    v_mul_f32 v17, v12, v13
    v_mul_f32 v19, v14, v15""")
    for n in (1, 2, 4, 8):
        for v in ("v17", "v19"): a(f"v_add_f32_dpp {v}, {v}, {v} row_ror:{n} row_mask:0xf bank_mask:0xf")
    for v, t in (("v17", "v3"), ("v19", "v4")): a(f"v_mov_b32 {t}, {v}\nv_permlane16_swap_b32 {t}, {v}\nv_add_f32 {v}, {v}, {t}")
    a(f"""v_rcp_f32 v17, v17
    v_rcp_f32 v19, v19
    v_mul_f32 v16, {CEXP}, v16
    v_mul_f32 v18, {CEXP}, v18
    v_mov_b32 v3, 1
    ds_write_b128 v2, v[16:19] offset:{MS}
    s_waitcnt lgkmcnt(0)
    ds_write_b32 v2, v3 offset:{FP}""")
    a("s_cmp_eq_u32 s28, 2\ns_cbranch_scc1 L_c_nomodg")
    if 'nomod' in exp: a("s_branch L_c_nomodg")
    srd(96, 36, 7168)
    a(f"""s_mul_i32 s30, s5, 896
    s_mov_b32 exec_hi, 0xffffff
    buffer_load_dwordx4 v[28:31], v1, s[96:99], s30 offen
    s_mov_b32 exec_hi, -1
    s_mul_i32 s30, s5, 5376
    s_add_u32 s30, s30, {MOD_OFF+1792}
    s_add_u32 s32, s30, {DUAL}
    v_and_b32 v3, 31, v0
    v_lshlrev_b32 v8, 4, v3""")
    poll_dual([f"buffer_load_dwordx4 {vr(12+4*k)}, {'v1' if k < 3 else 'v8'}, {WS}, s30 offen offset:{k*1024} sc1" for k in range(4)] +
              [f"buffer_load_dwordx4 {vr(32+4*k)}, {'v1' if k < 3 else 'v8'}, {WS}, s32 offen offset:{k*1024} sc1" for k in range(4)],
              [(12+k, 32+k) for k in range(16)], cnt="s33")
    for k in range(4): a(f"ds_write_b128 {'v1' if k < 3 else 'v8'}, {vr(12+4*k)} offset:{MODL+k*1024}")
    a(f"s_mov_b32 exec_hi, 0xffffff\nds_write_b128 v1, v[28:31] offset:{XL}")
    if upre and not wpre:
        srd(20, 50, 448*3584)
        a(f"v_mul_u32_u24 v3, 3584, v0\ns_mul_i32 s30, s5, {56*3584}\ns_lshl_b32 s31, s7, 7\ns_add_u32 s30, s30, s31\nbuffer_load_dword v24, v3, s[20:23], s30 offen")
    a("s_mov_b32 exec_hi, -1\nL_c_nomodg:")
    stamp(6)
    if diag: a("s_waitcnt lgkmcnt(0)\ns_mov_b32 s83, s92")
    a("L_c_skip:")
    a(f"""s_mul_i32 s30, s5, {28*1792}
    s_lshl_b32 s31, s7, 6
    s_add_u32 s30, s30, s31
    s_add_u32 s68, s30, {PD_OFF}
    s_add_u32 s69, s68, {2*1792}
    s_add_u32 s70, s68, {4*1792}
    s_add_u32 s71, s68, {6*1792}
    v_lshrrev_b32 v3, 4, v0
    v_mul_u32_u24 v3, {7*1792}, v3
    v_and_b32 v4, 15, v0
    v_lshl_add_u32 v8, v4, 2, v3
    s_lshl_b32 s30, s7, 4
    v_add_u32 v9, s30, v4
    v_lshlrev_b32 v10, 2, v9
    v_lshlrev_b32 v9, 1, v9
    s_mul_i32 s72, s5, 896""")
    srd(96, 58, 7168)
    a("s_waitcnt lgkmcnt(0)\ns_barrier\ns_cmp_eq_u32 s28, 2\ns_cbranch_scc1 L_st_end\ns_barrier\ns_barrier")
    a(f"ds_read_b32 v20, v10 offset:{X1L}\nds_read_u16 v21, v9 offset:{MODL+2688}\ns_waitcnt lgkmcnt(0)\nv_lshlrev_b32 v21, 16, v21\ns_barrier")
    stamp(5)
    a("L_final:\ns_mov_b32 s33, 0")
    L = a.label("pd"); D = a.label("pdd")
    a(f"{L}:")
    guard("\n".join(f"buffer_load_dword v{12+k}, v8, {WS}, s{68+(k>>1)} offen offset:{(k&1)*1792} sc1" for k in range(7)))
    a("s_waitcnt vmcnt(0)")
    check(range(12, 19), "v3")
    a(f"s_cbranch_vccz {D}\ns_add_u32 s33, s33, 1\ns_cmp_lt_u32 s33, {SPIN_MAX}\ns_cbranch_scc1 {L}\n{D}:")
    stamp(6)
    a("v_add_f32 v12, v12, v13\nv_add_f32 v14, v14, v15\nv_add_f32 v16, v16, v17\nv_add_f32 v12, v12, v18\nv_add_f32 v14, v14, v16\nv_add_f32 v12, v12, v14")
    xrow_reduce("v_add_f32", "v12", "v3")
    round1("v12"); a("v_mul_f32 v12, v12, v21"); round1("v12"); a("v_add_f32 v12, v12, v20\nv_cvt_pk_bf16_f32 v12, v12, v12")
    guard("s_mov_b64 exec, 0xffff\nbuffer_store_short v12, v9, s[96:99], s72 offen " + outpol)
    if dry: a("s_cbranch_execz L_dry3")
    if diag:
        a("s_mov_b64 exec, -1")
        stamp(7)
        a(f"""L_finish:
        s_waitcnt lgkmcnt(0)
        s_mov_b64 exec, -1
        v_mov_b32 v4, 0""")
        for i in range(8): a(f"v_writelane_b32 v4, s{80+2*i}, {i}")
        a("s_cmp_eq_u32 s81, 15\ns_cselect_b32 s30, s83, s80\nv_writelane_b32 v4, s30, 0")
        if 'hst' in exp: a("v_writelane_b32 v4, s76, 3\nv_writelane_b32 v4, s77, 4\nv_writelane_b32 v4, s83, 7")
        if 'rtt' in exp: a("s_cselect_b32 s30, s76, s82\nv_writelane_b32 v4, s30, 1\ns_cselect_b32 s30, s77, s86\nv_writelane_b32 v4, s30, 3")
        a(f"""s_getreg_b32 s30, hwreg(HW_REG_HW_ID)
        v_lshrrev_b32 v3, 6, v0
        s_lshl_b32 s30, s2, 9
        v_lshlrev_b32 v3, 2, v0
        s_lshl_b32 s31, s81, 5
        s_add_u32 s30, s30, s31
        s_add_u32 s30, s30, {TS_OFF}
        s_mov_b64 exec, 0xff
        buffer_store_dword v4, v3, {WS}, s30 offen""")
        if dbg:
            a(f"""s_mov_b64 exec, 1
            s_not_b32 s30, s80
            v_mov_b32 v5, s30
            global_atomic_umax v2, v5, s[60:61] sc1
            v_mov_b32 v5, s80
            global_atomic_umax v2, v5, s[60:61] offset:4 sc1
            s_cmp_eq_u32 s81, 15
            s_cbranch_scc0 L_d1
            s_mov_b64 exec, 0xfc
            global_atomic_umax v3, v4, s[60:61] sc1
            L_d1:
            s_cmp_eq_u32 s81, 0
            s_cbranch_scc0 L_d2
            s_mov_b64 exec, 0x3e
            global_atomic_umax v3, v4, s[60:61] offset:32 sc1
            L_d2:
            s_cmp_eq_u32 s81, 8
            s_cbranch_scc0 L_end
            s_mov_b64 exec, 0x18
            global_atomic_umax v3, v4, s[60:61] offset:44 sc1
            s_mov_b64 exec, 0x4
            global_atomic_umax v3, v4, s[60:61] offset:24 sc1""")
    a("L_end:\ns_endpgm")
    body = a.text()
    if diag: body = body.replace("    s_and_b32 s4, s2, 7\n", "    s_waitcnt lgkmcnt(0)\n    s_mov_b32 s81, s3\n    s_and_b32 s4, s2, 7\n", 1)
    hdr = open("adaLN_cond__sliding_block_cached__glu_gated_glu__decode.s.ref").read().split("; Override launch")[0]
    return (hdr + f"; @launch grid=(256,1,1) block=(1024,1,1) lds={LDS_BYTES}\n.amdgcn_target \"amdgcn-amd-amdhsa--gfx950\"\n.text\n.globl {NAME}\n.p2align 8\n.type {NAME},@function\n{NAME}:\n"
            + body + f""".section .rodata,"a"
.p2align 6
.amdhsa_kernel {NAME}
  .amdhsa_next_free_vgpr 128
  .amdhsa_next_free_sgpr 102
  .amdhsa_accum_offset 128
  .amdhsa_group_segment_fixed_size 0
  .amdhsa_kernarg_size 112
  .amdhsa_user_sgpr_count 2
  .amdhsa_user_sgpr_kernarg_segment_ptr 1
  .amdhsa_system_sgpr_workgroup_id_x 1
  .amdhsa_float_denorm_mode_32 3
.end_amdhsa_kernel
""")

if __name__ == "__main__":
    kw = eval("dict(%s)" % (sys.argv[2] if len(sys.argv) > 2 else ""))
    open(sys.argv[1], "w").write(gen(**kw))
```

```python
import struct, math, sys
from asm2 import Asm
NAME = "adaLN_cond__sliding_block_cached__glu_gated_glu__decode_kernel"
def f32(x): return "0x%08x" % struct.unpack("<I", struct.pack("<f", x))[0]

MOD_OFF, Q_OFF, SC_OFF, ST_OFF, PA_OFF, PD_OFF, TS_OFF = 0x0, 0x10000, 0x20000, 0xA0000, 0xB0000, 0x120000, 0x200000
DUAL = 0x190000
CERT_OFF, XN_OFF = 0xA8000, 0xA9000
TAG = 's78'
FQ, FP, CRIT, KDONE, RC0, RC1, RC2, TAGC, MS, F0, XC, FC, F1, TRIG, VISS, ODONE = 0, 4, 8, 12, 16, 20, 24, 28, 32, 48, 52, 56, 60, 64, 68, 72
OACC, GUACC, STL, X1L, XST, QL, MODL, XL, SCL, RED, GU = 0x100, 0x500, 0x80, 0x900, 0x900, 0x1000, 0x1400, 0x2200, 0x2800, 0x4800, 0x8000
KST = 0x16000
LDS_BYTES = 0x26000
W0, W1, W2 = 32, 64, 96
SPIN_MAX = 1 << 20

def gen(dk=3, dv=3, dv3=5, dw=2, diag=False, dry=True, pol="nt", dbg=False, hold=False, probe=False, exp='', pdefer=True, marks=None, dkp=3, pw=3, remap=True, pprobe=False, uplate=True, sprio=1, dlast=3, dwp=2, kslow=False, vslow=False, wpre=False, d0=8, dkh=None, dvhp=4, split=True, yprio=0, coop=False, period=8, trig=10, sq=True, ssa=False, warm=True, fastfin=True, viss=7, dkq=4, dq=8, upre=False, selp=True, outpol='', wpol='', sq2=True, bal=0, balt=5, remap2=True, ddrop=1, dropat=20, late=False, burst=0):
    a = Asm(); a.period = period
    SELLO, SELHI, HIM, CEXP = "s64", "s65", "s66", "s67"
    def vr(b, n=4): return f"v[{b}:{b+n-1}]"
    mode = {'stream': False}
    def stamp(i, force=False):
        if diag and (force or not (marks and mode['stream'])): a(f"s_memrealtime s[{80+2*i}:{81+2*i}]")
    def mark(n):
        if marks and n in marks: stamp(1 + marks.index(n), True)
    def srd(d, p, size):
        a(f"s_mov_b32 s{d}, s{p}\ns_mov_b32 s{d+1}, s{p+1}\ns_mov_b32 s{d+2}, {size}\ns_mov_b32 s{d+3}, 0x20000")
    def lds_spin(off, target, vt="v3", st="s30", nap=True):
        L = a.label("spin"); D = a.label("spind")
        a(f"""{L}:
        ds_read_b32 {vt}, v2 offset:{off}
        s_waitcnt lgkmcnt(0)
        v_readfirstlane_b32 {st}, {vt}
        s_cmp_ge_u32 {st}, {target}
        s_cbranch_scc1 {D}
        {'s_sleep 1' if nap else ''}
        s_branch {L}
        {D}:""")
    def lds_inc(off, vt="v3"):
        a(f"v_mov_b32 {vt}, 1\ns_mov_b64 exec, 1\nds_add_u32 v2, {vt} offset:{off}\ns_mov_b64 exec, -1")
    def unpack2(lo, hi, pk):
        a(f"v_lshlrev_b32 {lo}, 16, {pk}\nv_and_b32 {hi}, {HIM}, {pk}") if lo != pk else a(f"v_and_b32 {hi}, {HIM}, {pk}\nv_lshlrev_b32 {lo}, 16, {pk}")
    def round2(x, y, t):
        a(f"v_cvt_pk_bf16_f32 {t}, {x}, {y}"); unpack2(x, y, t)
    def round1(x):
        a(f"v_cvt_pk_bf16_f32 {x}, {x}, {x}\nv_lshlrev_b32 {x}, 16, {x}")
    def transpose_inplace(Wb, t0="v4", t1="v5"):
        P = lambda i, d: (f"v{Wb+8*i+d}", f"v{Wb+8*i+4+d}")
        for i in range(4):
            e, o = P(i, i)
            a(f"v_perm_b32 {t0}, {o}, {e}, {SELLO}\nv_perm_b32 {o}, {o}, {e}, {SELHI}\nv_mov_b32 {e}, {t0}")
            for d in range(i+1, 4):
                e, o = P(i, d); e2, o2 = P(d, i)
                a(f"""v_perm_b32 {t0}, {o}, {e}, {SELLO}
                v_perm_b32 {t1}, {o}, {e}, {SELHI}
                v_perm_b32 {e}, {o2}, {e2}, {SELLO}
                v_perm_b32 {o}, {o2}, {e2}, {SELHI}
                v_mov_b32 {e2}, {t0}
                v_mov_b32 {o2}, {t1}""")
    def block_voff(v, stride):
        a(f"v_lshrrev_b32 v3, 3, v0\nv_mul_u32_u24 v3, {8*stride}, v3\nv_and_b32 {v}, 7, v0\nv_lshl_add_u32 {v}, {v}, 4, v3")
    def ffpace(pace):
        L = a.label("ff")
        a(f"s_cmp_ge_u32 s77, 8\ns_cbranch_scc1 {L}")
        a.vm_pace(pace)
        a(f"ds_read_b32 v3, v2 offset:{VISS}\ns_waitcnt lgkmcnt(0)\nv_readfirstlane_b32 s77, v3\n{L}:")
    def load_block(dst, voff, sr, soff, stride, pace=None, tag=None, fill=None, ff=False):
        pol = wpol if stride in (896, 3584) else 'nt'
        for i in range(8):
            if ff: ffpace(pace)
            elif pace: a.vm_pace(pace)
            a.vmem(f"buffer_load_dwordx4 {vr(dst+4*i)}, {voff}, s[{sr}:{sr+3}], {soff} offen {pol}", tag)
            if i < 7: a(f"s_add_u32 {soff}, {soff}, {stride}")
            if fill and i in fill: fill[i]()
    def dma_block(ldsbase_s, voff, sr, soff, stride, pace=None, tag=None, fill=None, ff=False):
        pol = wpol
        for i in range(8):
            a(f"s_add_u32 m0, {ldsbase_s}, {i*1024}")
            if ff: ffpace(pace)
            elif pace: a.vm_pace(pace)
            a.vmem(f"buffer_load_dwordx4 {voff}, s[{sr}:{sr+3}], {soff} offen {pol} lds", tag)
            if i < 7: a(f"s_add_u32 {soff}, {soff}, {stride}")
            if fill and i in fill: fill[i]()
    def poll(loads, regs, vt="v3", cnt="s31"):
        L = a.label("poll"); D = a.label("polld")
        if 'rtt' in exp: a("s_mov_b32 s76, 0\ns_mov_b32 s77, 0")
        a(f"s_mov_b32 {cnt}, 0\n{L}:")
        if 'rtt' in exp: a("s_memrealtime s[96:97]")
        for l in loads: a(l)
        a("s_waitcnt vmcnt(0)")
        if 'rtt' in exp: a("s_memrealtime s[98:99]\ns_waitcnt lgkmcnt(0)\ns_sub_u32 s98, s98, s96\ns_lshl_b32 s77, s77, 8\ns_lshr_b32 s96, s76, 24\ns_or_b32 s77, s77, s96\ns_lshl_b32 s76, s76, 8\ns_lshr_b32 s98, s98, 1\ns_min_u32 s98, s98, 255\ns_or_b32 s76, s76, s98")
        check(regs, vt)
        a(f"""s_cbranch_vccz {D}
        s_add_u32 {cnt}, {cnt}, 1
        s_cmp_lt_u32 {cnt}, {SPIN_MAX}
        s_cbranch_scc1 {L}
        {D}:""")
        a.vm_reset()
    def poll_dual(loads, pairs, cnt="s31"):
        L = a.label("pollx"); D = a.label("pollxd")
        a(f"s_mov_b32 {cnt}, 0\n{L}:")
        for l in loads: a(l)
        a("s_waitcnt vmcnt(0)")
        for k, (x, y) in enumerate(pairs):
            a(f"v_xor_b32 v{y}, v{x}, v{y}\nv_xor_b32 v{y}, {TAG}, v{y}")
            if k: a(f"v_or_b32 v{pairs[0][1]}, v{pairs[0][1]}, v{y}")
        a(f"""v_cmp_ne_u32 vcc, 0, v{pairs[0][1]}
        s_cbranch_vccz {D}
        s_add_u32 {cnt}, {cnt}, 1
        s_cmp_lt_u32 {cnt}, {SPIN_MAX}
        s_cbranch_scc1 {L}
        {D}:""")
        a.vm_reset()
    def sprobe(base_code, offs, regs):
        L = a.label("sp"); D = a.label("spd"); n = len(offs)
        a(base_code)
        a(f"s_add_u32 s34, s62, s30\ns_addc_u32 s35, s63, 0\ns_add_u32 s100, s34, {DUAL}\ns_addc_u32 s101, s35, 0\ns_mov_b32 s33, 0\n{L}:")
        a("s_mov_b32 s31, 0")
        for k0 in range(0, n, len(regs)//2):
            part = offs[k0:k0+len(regs)//2]
            for k, o in enumerate(part): a(f"s_load_dword s{regs[2*k]}, s[34:35], {o:#x} glc\ns_load_dword s{regs[2*k+1]}, s[100:101], {o:#x} glc")
            a("s_waitcnt lgkmcnt(0)")
            for k, o in enumerate(part): a(f"s_xor_b32 s30, s{regs[2*k]}, s{regs[2*k+1]}\ns_xor_b32 s30, s30, {TAG}\ns_or_b32 s31, s31, s30")
        a(f"s_cmp_eq_u32 s31, 0\ns_cbranch_scc1 {D}\ns_add_u32 s33, s33, 1\ns_cmp_lt_u32 s33, 256\ns_cbranch_scc1 {L}\n{D}:")
    def tag_load(v="v5"):
        a(f"s_mov_b32 s30, {XN_OFF}")
        a.vmem(f"buffer_load_dword {v}, v2, s[24:27], s30 offen sc1", "tag")
    def tag_wait(v="v5", wait=True):
        if wait: a.vm_wait("tag")
        a(f"v_readfirstlane_b32 {TAG}, {v}\ns_add_u32 {TAG}, {TAG}, 0x9e3779b9")
    def check(regs, vt):
        r = list(regs)
        if len(r) == 1: a(f"v_cmp_eq_u32 vcc, -1, v{r[0]}"); return
        if len(r) == 2: a(f"v_max_u32 {vt}, v{r[0]}, v{r[1]}"); r = []
        else: a(f"v_max3_u32 {vt}, v{r[0]}, v{r[1]}, v{r[2]}"); r = r[3:]
        while r:
            if len(r) >= 2: a(f"v_max3_u32 {vt}, {vt}, v{r[0]}, v{r[1]}"); r = r[2:]
            else: a(f"v_max_u32 {vt}, {vt}, v{r[0]}"); r = []
        a(f"v_cmp_eq_u32 vcc, -1, {vt}")
    def cnt_poll(off, targets):
        L = a.label("cp"); D = a.label("cpd"); n = len(targets)
        a(f"s_mov_b32 s31, 0\n{L}:")
        if n == 1: a(f"global_load_dword v4, {off}, s[60:61] sc1")
        else: a(f"global_load_dwordx2 v[4:5], {off}, s[60:61] sc1")
        a("s_waitcnt vmcnt(0)")
        a(f"v_cmp_gt_u32 vcc, {targets[0]}, v4")
        if n == 2: a(f"v_cmp_gt_u32 s[32:33], {targets[1]}, v5\ns_or_b64 vcc, vcc, s[32:33]")
        a(f"""s_cbranch_vccz {D}
        s_add_u32 s31, s31, 1
        s_cmp_lt_u32 s31, {SPIN_MAX}
        s_cbranch_scc1 {L}
        {D}:""")
        a.vm_reset()
    def row_reduce(op, v, steps=(1, 2, 4, 8)):
        for n in steps: a(f"{op}_dpp {v}, {v}, {v} row_ror:{n} row_mask:0xf bank_mask:0xf")
    def xrow_reduce(op, v, t):
        a(f"v_mov_b32 {t}, {v}\nv_permlane16_swap_b32 {t}, {v}\n{op} {v}, {v}, {t}\nv_mov_b32 {t}, {v}\nv_permlane32_swap_b32 {t}, {v}\n{op} {v}, {v}, {t}")
    def guard(text):
        if not dry: a(text); return
        L = a.label("g"); a(f"s_cbranch_execz {L}"); a(text); a(f"{L}:")
    def setexec(val):
        lo, hi = val & 0xffffffff, val >> 32
        return f"s_mov_b32 exec_lo, {lo:#x}\ns_mov_b32 exec_hi, {hi:#x}"
    def finish(): a("s_branch L_finish" if diag else "s_endpgm")

    a(f"""
    s_cmp_ge_u32 s2, 256
    s_cbranch_scc1 L_end
    s_load_dwordx16 s[36:51], s[0:1], 0
    s_load_dwordx8 s[52:59], s[0:1], 64
    s_load_dwordx4 s[60:63], s[0:1], 96
    """)
    if diag:
        for i in range(1, 8): a(f"s_mov_b32 s{80+2*i}, 0")
    stamp(0)
    a(f"""
    v_lshrrev_b32 v1, 6, v0
    v_and_b32 v0, 63, v0
    v_mov_b32 v2, 0
    v_readfirstlane_b32 s3, v1
    s_and_b32 s4, s2, 7
    s_bfe_u32 s5, s2, 0x30003
    s_lshr_b32 s6, s2, 6
    s_cmp_eq_u32 s6, 0
    s_cselect_b32 s28, 1, 2
    s_cmp_eq_u32 s6, 1
    s_cselect_b32 s28, 0, s28
    s_cmp_ge_u32 s4, {0 if 'nohp' in exp else 2}
    s_cselect_b32 s28, 0, s28
    s_mov_b32 {SELLO}, 0x05040100
    s_mov_b32 {SELHI}, 0x07060302
    s_mov_b32 {HIM}, 0xffff0000
    s_mov_b32 {CEXP}, {f32(math.log2(math.e)/16)}
    s_cmp_ge_u32 s3, 8
    s_cbranch_scc1 L_notstream
    """)
    def roles():
        a(f"""s_add_u32 s30, s6, {1 if remap else 0}
        s_and_b32 s30, s30, 3
        s_lshl_b32 s7, s4, 2
        s_add_u32 s7, s7, s30
        s_sub_u32 s7, s7, 4
        s_lshl_b32 s30, s4, 1
        s_add_u32 s30, s30, s6
        s_cmp_ge_u32 s4, 2
        s_cselect_b32 s7, s7, s30""")
    def pro_roles():
        if not remap2 or 'nohp' in exp: return pro_roles1()
        L1 = a.label("pr"); L2 = a.label("pr")
        a(f"""s_lshl_b32 s30, s4, 3
        s_add_u32 s30, s30, s5
        s_cmp_ge_u32 s4, 2
        s_cbranch_scc0 {L1}
        s_mul_i32 s29, s5, 6
        s_add_u32 s29, s29, s4
        s_add_u32 s29, s29, 14
        s_lshl_b32 s31, s6, 8
        s_add_u32 s31, s31, s29
        s_cmp_lt_u32 s31, 32
        s_cselect_b32 s79, 1, 0
        s_cmp_eq_u32 s5, 3
        s_cselect_b32 s31, 9, s6
        s_cmp_eq_u32 s31, 1
        s_cselect_b32 s29, s30, s29
        s_cselect_b32 s79, 2, s79
        s_branch {L2}
        {L1}:
        s_lshl_b32 s29, s5, 1
        s_add_u32 s29, s29, s4
        s_cmp_eq_u32 s6, 0
        s_cselect_b32 s79, 1, 0
        s_cmp_eq_u32 s6, 2
        s_cselect_b32 s29, s30, s29
        s_cselect_b32 s79, 2, s79
        s_cmp_eq_u32 s6, 3
        s_cbranch_scc0 {L2}
        s_lshl_b32 s29, s30, 3
        s_add_u32 s29, s29, 19
        s_add_u32 s31, s30, 26
        s_cmp_lt_u32 s30, 6
        s_cselect_b32 s29, s29, s31
        s_cselect_b32 s79, 2, 1
        {L2}:""")
    def pro_roles1():
        a(f"""s_mul_i32 s30, s5, 6
        s_add_u32 s30, s30, s4
        s_add_u32 s30, s30, 14
        s_lshl_b32 s31, s5, 1
        s_add_u32 s31, s31, s4
        s_cmp_ge_u32 s4, 2
        s_cselect_b32 s29, s30, s31
        s_cselect_b32 s31, 1, 2
        s_lshl_b32 s30, s6, 8
        s_add_u32 s30, s30, s29
        s_cmp_lt_u32 s30, {0 if 'nohp' in exp else 42}
        s_cselect_b32 s79, 1, 0
        s_lshl_b32 s30, s4, 3
        s_add_u32 s30, s30, s5
        s_cmp_eq_u32 s6, {'s31' if 'nohp' not in exp else 9}
        s_cselect_b32 s29, s30, s29
        s_cselect_b32 s79, 2, s79""")
    WS = "s[24:27]"
    def ws_srd(): srd(24, 62, hex(0x300000 if diag else 0x200000))

    def g_prep():
        guard("s_barrier")
        a(f"s_lshl_b32 s33, s3, 13\ns_add_u32 s33, s33, {GU}\nv_lshlrev_b32 v3, 4, v0\nv_add_u32 v3, s33, v3")
        for i in range(8): a(f"ds_read_b128 {vr(W0+4*i)}, v3 offset:{i*1024}")
        a(f"""v_lshrrev_b32 v3, 4, v0
        v_and_b32 v4, 1, v0
        v_lshl_add_u32 v3, v3, 1, v4
        v_bfe_u32 v4, v0, 1, 2
        v_lshlrev_b32 v4, 1, v4
        v_lshl_add_u32 v12, v3, 3, v4
        s_lshl_b32 s30, s3, 6
        v_add_u32 v13, s30, v12
        v_lshlrev_b32 v3, 1, v13
        ds_read_b32 v14, v3 offset:{MODL+896}
        ds_read_b32 v16, v3 offset:{MODL+1792}
        v_lshlrev_b32 v13, 2, v13
        v_and_b32 v3, 7, v0
        v_cmp_gt_u32 vcc, 7, v3
        v_cndmask_b32 v18, 0, v3, vcc
        v_mov_b32 v4, {f32(1/7)}
        v_cndmask_b32 v20, 0, v4, vcc
        v_mov_b32 v4, {f32(1/448)}
        v_cndmask_b32 v21, 0, v4, vcc
        v_lshlrev_b32 v19, 8, v18
        v_lshlrev_b32 v18, 3, v18
        v_lshlrev_b32 v22, 3, v0
        s_waitcnt lgkmcnt(0)""")
        unpack2("v14", "v15", "v14"); unpack2("v16", "v17", "v16")
        a("v_add_f32 v16, 1.0, v16\nv_add_f32 v17, 1.0, v17"); round2("v16", "v17", "v3")
        transpose_inplace(W0)
        a("s_waitcnt vmcnt(0)")
        transpose_inplace(W1)
    def g_stage():
        guard("s_barrier")
        stamp(7, True)
        a(f"""ds_read_b64 v[24:25], v18 offset:{STL}
        ds_read_b32 v26, v19 offset:{X1L}
        ds_read_b64 v[28:29], v13 offset:{X1L}
        s_waitcnt lgkmcnt(1)
        v_mul_f32 v3, {f32(1/64)}, v24
        v_add_f32 v26, v26, v3
        v_fma_f32 v25, -v3, v24, v25
        v_mul_f32 v27, v26, v20""")
        row_reduce("v_add_f32", "v27", (1, 2, 4))
        a(f"v_sub_f32 v26, v26, v27\nv_mul_f32 v26, v26, v26\nv_fmac_f32 v25, {f32(64.0)}, v26\nv_mul_f32 v25, v25, v21")
        a("s_waitcnt lgkmcnt(0)\nv_cvt_pk_bf16_f32 v27, v27, v27")
        a("v_add_f32_dpp v25, v25, v25 row_ror:1 row_mask:0xf bank_mask:0xf\nv_lshlrev_b32 v27, 16, v27\nv_sub_f32 v28, v28, v27")
        a("v_add_f32_dpp v25, v25, v25 row_ror:2 row_mask:0xf bank_mask:0xf\nv_sub_f32 v29, v29, v27\nv_cvt_pk_bf16_f32 v3, v28, v29")
        a("v_add_f32_dpp v25, v25, v25 row_ror:4 row_mask:0xf bank_mask:0xf")
        unpack2("v28", "v29", "v3")
        round1("v25"); a(f"v_add_f32 v25, {f32(1e-5)}, v25"); round1("v25")
        a("v_sqrt_f32 v25, v25"); round1("v25")
        a("v_rcp_f32 v25, v25\nv_mul_f32 v28, v28, v25\nv_mul_f32 v29, v29, v25"); round2("v28", "v29", "v3")
        a("v_mul_f32 v28, v28, v16\nv_mul_f32 v29, v29, v17"); round2("v28", "v29", "v3")
        a("v_add_f32 v28, v28, v14\nv_add_f32 v29, v29, v15\nv_cvt_pk_bf16_f32 v24, v28, v29")
        for d in range(1, 4): a(f"v_mov_b32_dpp v{24+d}, v24 row_ror:{16-2*d} row_mask:0xf bank_mask:0xf")
        if 'gst' in exp: stamp(1, True)
        def comb(Wb, R, j):
            Dj = Wb + 4*j; up = j & 1
            a(f"v_add_f32_dpp v{R+((j>>1)&1)}, v{Dj+1-up}, v{Dj+up} row_ror:8 row_mask:{1<<(2*(j>>2)):#x} bank_mask:{0xc if up else 0x3:#x}")
        od = (0, 2, 4, 6, 1, 3, 5, 7)
        for j in od: a(f"v_mfma_f32_16x16x32_bf16 {vr(W0+4*j)}, v[24:27], {vr(W0+4*j)}, 0")
        for k, j in enumerate(od):
            a(f"v_mfma_f32_16x16x32_bf16 {vr(W1+4*j)}, v[24:27], {vr(W1+4*j)}, 0"); comb(W0, 28, j)
        a(f"v_permlane16_swap_b32 v28, v29\nv_cvt_f64_f32 v[4:5], v28\nds_add_f64 v22, v[4:5] offset:{GUACC}")
        for j in od: comb(W1, 30, j)
        if 'gst' in exp: stamp(2, True)
        a(f"v_permlane16_swap_b32 v30, v31\nv_cvt_f64_f32 v[6:7], v30\nds_add_f64 v22, v[6:7] offset:{GUACC+512}\ns_waitcnt lgkmcnt(0)")
        if 'gst' in exp: stamp(3, True)
        guard("s_barrier")
    a("L_stream:")
    mode['stream'] = True
    a(f"""s_lshl_b32 s30, s5, 3
    s_add_u32 s30, s30, s4
    s_lshl_b32 s31, s30, 22
    s_add_u32 s31, s31, 0x300000
    v_bfe_u32 v3, v0, 1, 3
    v_lshlrev_b32 v1, 10, v3
    v_and_b32 v4, 1, v0
    v_lshl_add_u32 v1, v4, 4, v1
    v_and_b32 v3, 7, v0
    v_lshrrev_b32 v4, 4, v0
    v_lshl_add_u32 v1, v4, 5, v1
    v_lshrrev_b32 v4, 3, v0
    v_lshlrev_b32 v4, 12, v4
    v_lshl_add_u32 v14, v3, 4, v4
    s_lshl_b32 s32, s6, 15
    s_lshr_b32 s33, s3, 1
    s_lshl_b32 s33, s33, 13
    s_add_u32 s34, s32, s33
    s_and_b32 s33, s3, 1
    s_lshl_b32 s33, s33, 9
    s_add_u32 s68, s34, s33
    s_lshl_b32 s32, s6, 7
    s_lshl_b32 s33, s3, 15
    s_add_u32 s35, s32, s33
    s_lshl_b32 s33, s3, 13
    s_add_u32 s33, s33, {KST}
    s_waitcnt lgkmcnt(0)
    s_add_u32 s8, s38, s31
    s_addc_u32 s9, s39, 0
    s_mov_b32 s10, 0x100000
    s_mov_b32 s11, 0x20000
    s_add_u32 s12, s40, s31
    s_addc_u32 s13, s41, 0
    s_mov_b32 s14, 0x100000
    s_mov_b32 s15, 0x20000""")
    a.vm_reset()
    kslot = lambda t: 32 + 16*(t if t < 6 else t - 2)
    nk = [0]
    korder = ([(t, 3) for t in range(8)] + [(t, j) for t in range(8) for j in range(3)]) if kslow else [(t, j) for t in range(8) for j in range(4)]
    def kload(t, j, dk):
        if t >= 6: a(f"s_add_u32 m0, s33, {(t-6)*4096 + j*(1024-128)}")
        dd = max(dk, d0) if (kslow and nk[0] < 8) else dk
        if nk[0] >= int(dd): a.vm_pace(dd)
        if t < 6: a.vmem(f"buffer_load_dwordx4 {vr(kslot(t)+4*j)}, v1, s[8:11], s{68+t} offen offset:{j*128} {pol}", f"k{t}")
        else: a.vmem(f"buffer_load_dwordx4 v1, s[8:11], s{68+t} offen offset:{j*128} {pol} lds", f"k{t}")
        mark(nk[0])
        nk[0] += 1
    def kmm(t):
        if t < 6: a.vm_wait(f"k{t}")
        D = 4 + 4*(t & 1)
        for j in range(4): a(f"v_mfma_f32_16x16x32_bf16 {vr(D)}, {vr(16+4*j)}, {vr(kslot(t)+4*j)}, {vr(D) if j else 0}")
    def kfin(t):
        D = 4 + 4*(t & 1); up = t & 1
        for h in range(2):
            dst = (SO0, SO1)[h] if up else f"v{12+h}"
            a(f"v_add_f32_dpp {dst}, v{D+h+(0 if up else 2)}, v{D+h+(2 if up else 0)} quad_perm:{'[0,0,2,2]' if up else '[1,1,3,3]'} row_mask:{1<<(t>>1):#x} bank_mask:0xf")
    SO0, SO1 = "v1", "v15"
    for t in range(1, 8): a(f"s_add_u32 s{68+t}, s68, {t*4*32768}")
    a("s_cmp_eq_u32 s28, 1\ns_cbranch_scc1 L_st_hp")
    for n, (t, j) in enumerate(korder):
        kload(t, j, dk)
        if n == int(dk) - 1:
            pro_roles(); a("s_barrier")
            if dkq is not None:
                a("s_cmp_lg_u32 s79, 0\ns_cbranch_scc1 L_st_q"); sv_vm, sv_n = list(a.vm), nk[0]
    if dkq is not None:
        a("s_branch L_st_kdone\nL_st_q:")
        a.vm = sv_vm; nk[0] = sv_n
        for t, j in korder[sv_n:]: kload(t, j, dkq)
    a("s_branch L_st_kdone\nL_st_hp:\ns_mov_b32 s79, 1\ns_barrier")
    lds_spin(CRIT, 7)
    a.vm_reset(); nk[0] = 0
    for t, j in korder: kload(t, j, dkp)
    a("L_st_kdone:")
    if yprio: a("s_cmp_ge_u32 s3, 4\ns_cbranch_scc0 L_st_old\ns_setprio 1\nL_st_old:")
    ws_srd()
    stamp(1)
    lds_spin(FQ, 1)
    stamp(2)
    a(f"""v_and_b32 v3, 1, v0
    v_lshlrev_b32 v3, 9, v3
    v_bfe_u32 v4, v0, 1, 1
    v_lshl_add_u32 v3, v4, 4, v3
    v_lshrrev_b32 v4, 4, v0
    v_lshl_add_u32 v3, v4, 5, v3""")
    for j in range(4): a(f"ds_read_b128 {vr(16+4*j)}, v3 offset:{QL+j*128}")
    a("s_waitcnt lgkmcnt(0)")
    a("s_mov_b32 s72, s35")
    for r in range(1, 4): a(f"s_add_u32 s{72+r}, s35, {r*8*32768}")
    kmm(2); kmm(3); kfin(2)
    vreg = lambda r: {0: 64, 1: 32, 2: 32, 3: 64}[r]
    def vphase(d, slowfirst):
        vm0 = list(a.vm); nv = [0]
        def vload(r, i):
            if r == 2: a(f"s_add_u32 m0, s101, {i*512}")
            Lb = None
            if burst and r == 3:
                Lb = a.label("bu")
                if i == 0: a("s_mov_b32 s77, 0")
                a(f"s_cmp_ge_u32 s77, {burst}\ns_cbranch_scc1 {Lb}")
            a.vm_pace((d if r < 3 else max(d, dlast)) - (ddrop if nv[0] >= dropat else 0))
            if Lb: a(f"ds_read_b32 v3, v2 offset:{VISS}\ns_waitcnt lgkmcnt(0)\nv_readfirstlane_b32 s77, v3\n{Lb}:")
            if r == 2: a.vmem(f"buffer_load_dwordx4 v14, s[12:15], s{72+r} offen offset:{i*512} {pol} lds", f"v{r}")
            else: a.vmem(f"buffer_load_dwordx4 {vr(vreg(r)+4*i)}, v14, s[12:15], s{72+r} offen offset:{i*512} {pol}", f"v{r}")
            if r == 3 and i == viss: lds_inc(VISS)
            mark(32 + nv[0]); nv[0] += 1
        def publish0():
            a(f"""s_mov_b32 s30, 0xaaaaaaaa
            s_mov_b32 s31, 0xaaaaaaaa
            v_cndmask_b32 v12, v12, {SO0}, s[30:31]
            v_cndmask_b32 v13, v13, {SO1}, s[30:31]
            v_lshlrev_b32 v15, 4, v0
            v_add_u32 v15, s101, v15
            v_cvt_pk_bf16_f32 v96, v12, v13
            s_lshl_b32 s30, s5, 3
            s_add_u32 s30, s30, s4
            s_lshl_b32 s31, s6, 3
            s_add_u32 s31, s31, s3
            v_min_u32 v96, -2, v96
            s_lshl_b32 s32, s30, 13
            s_lshl_b32 s33, s31, 8
            s_add_u32 s32, s32, s33
            s_add_u32 s32, s32, {SC_OFF}
            v_and_b32 v3, 0x30, v0
            v_and_b32 v97, 1, v0
            v_lshl_add_u32 v3, v97, 3, v3
            v_bfe_u32 v97, v0, 1, 3
            v_add_lshl_u32 v3, v3, v97, 2""")
            a.vmem(f"buffer_store_dword v96, v3, {WS}, s32 offen sc1")
            unpack2("v12", "v13", "v96")
            a("v_mov_b32 v100, v12\nv_mov_b32 v101, v13\nv_permlane32_swap_b32 v100, v101\nv_max_f32 v100, v100, v101")
            row_reduce("v_max_f32", "v100")
            a(f"""v_mov_b32 v3, v100
            v_permlane16_swap_b32 v3, v100
            v_max_f32 v100, v100, v3
            v_mov_b32 v102, v100
            v_permlane32_swap_b32 v100, v102
            s_lshl_b32 s32, s30, 9
            s_lshl_b32 s33, s31, 4
            s_add_u32 s32, s32, s33
            s_add_u32 s32, s32, {ST_OFF}
            v_sub_f32 v101, v12, v100
            v_sub_f32 v103, v13, v102
            v_mul_f32 v101, {CEXP}, v101
            v_mul_f32 v103, {CEXP}, v103
            v_exp_f32 v101, v101
            v_exp_f32 v103, v103
            v_permlane32_swap_b32 v101, v103
            v_add_f32 v101, v101, v103""")
            row_reduce("v_add_f32", "v101")
            a("""v_mov_b32 v3, v101
            v_permlane16_swap_b32 v3, v101
            v_add_f32 v101, v101, v3
            v_mov_b32 v103, v101
            v_permlane32_swap_b32 v101, v103
            s_mov_b64 exec, 1""")
            a.vmem(f"buffer_store_dwordx4 v[100:103], v2, {WS}, s32 offen sc1")
            a(f"v_mov_b32 v3, 1\nds_add_u32 v2, v3 offset:{KDONE}\ns_mov_b64 exec, -1")
            stamp(3)
        def zero_a():
            for k in range(16, 32): a(f"v_mov_b32 v{k}, 0")
        def softmax():
            lds_spin(FP, 1)
            stamp(4)
            a(f"""v_lshrrev_b32 v3, 4, v0
            v_bfe_u32 v4, v0, 1, 1
            v_lshlrev_b32 v3, 9, v3
            v_lshl_add_u32 v3, v4, 4, v3
            v_bfe_u32 v4, v0, 2, 2
            v_lshl_add_u32 v3, v4, 6, v3
            s_and_b32 s30, s3, 3
            s_lshl_b32 s30, s30, 11
            s_lshr_b32 s31, s3, 2
            s_lshl_b32 s31, s31, 5
            s_add_u32 s30, s30, s31
            v_add_u32 v3, s30, v3
            ds_read_b128 v[108:111], v3 offset:{SCL}
            ds_read_b128 v[112:115], v3 offset:{SCL+256}
            v_and_b32 v4, 1, v0
            v_lshlrev_b32 v5, 3, v4
            ds_read_b64 v[116:117], v5 offset:{MS}
            v_mul_u32_u24 v4, 0x0202, v4
            v_lshlrev_b32 v4, 16, v4
            v_add_u32 v4, 0x05040c0c, v4
            s_waitcnt lgkmcnt(0)""")
            for i in range(8): a(f"v_perm_b32 v{108+i}, v{108+i}, v{108+i}, v4")
            for i in range(8): a(f"v_fma_f32 v{108+i}, v{108+i}, {CEXP}, -v116")
            for i in range(8): a(f"v_exp_f32 v{108+i}, v{108+i}")
            for i in range(8): a(f"v_mul_f32 v{108+i}, v{108+i}, v117")
            for k in range(4): a(f"v_cvt_pk_bf16_f32 v{96+k}, v{108+k}, v{112+k}")
        def amake(r):
            for jj in range(4):
                n = (4*(jj - r)) % 16
                for k in range(4):
                    a(f"v_mov_b32_dpp v{16+4*jj+k}, v{96+k} " + (f"row_ror:{n}" if n else "quad_perm:[0,1,2,3]") + f" row_mask:0xf bank_mask:{1<<jj:#x}")
        def pv(r, js):
            R = vreg(r)
            for j in js:
                T = 108 + 4*(j & 3)
                for i2 in range(4): a(f"v_perm_b32 v{T+i2}, v{R+8*i2+4+(j>>1)}, v{R+8*i2+(j>>1)}, {SELHI if j & 1 else SELLO}")
                D = 100 + 4*(j >> 2)
                a(f"v_mfma_f32_16x16x32_bf16 {vr(D)}, {vr(16+4*(j&3))}, {vr(T)}, {vr(D) if (r or j & 3) else 0}")
        if slowfirst: order = [(r, i) for par in (0, 1) for r in range(3) for i in range(par, 8, 2)]
        else: order = [(r, i) for r in range(3) for i in range(8)]
        assert d <= 8
        todo = [softmax, lambda: (amake(0), a.vm_wait("v0"), pv(0, range(0, 3))), lambda: pv(0, range(3, 8))]
        for n, (r, i) in enumerate(order):
            vload(r, i)
            if n == 0:
                kmm(0); kfin(3); kmm(1); kfin(0)
                a("s_mov_b32 s101, s33")
            if n == 1: kmm(4); kfin(1); kmm(5); kfin(4)
            if n == 2:
                kfin(5); a("v_lshlrev_b32 v3, 4, v0\nv_add_u32 v3, s33, v3"); a.vm_wait("k7")
                for k in range(8): a(f"ds_read_b128 {vr(96+4*k)}, v3 offset:{k*1024}")
                a("s_waitcnt lgkmcnt(4)"); kmm(6); a("s_waitcnt lgkmcnt(0)"); kmm(7); kfin(6); kfin(7)
                if not split: publish0()
            if n == 3 and split: publish0()
            if n == 5: zero_a()
            if trig and n == trig: lds_inc(TRIG)
            if n >= 16 + pw and todo: todo.pop(0)()
        while todo: todo.pop(0)()
        def get2():
            a.vm_wait("v2")
            for k in range(8): a(f"ds_read_b128 {vr(32+4*k)}, v15 offset:{k*1024}")
            amake(2); a("s_waitcnt lgkmcnt(0)")
        todo = [lambda: (amake(1), a.vm_wait("v1"), pv(1, range(0, 4))), lambda: pv(1, range(4, 8)), None, get2, lambda: pv(2, range(0, 4)), lambda: pv(2, range(4, 8))]
        if dlast >= 8:
            for i in range(8): vload(3, i)
            for f in todo:
                if f: f()
        else:
            for i in range(8):
                vload(3, i)
                if todo:
                    f = todo.pop(0)
                    if f: f()
        a.vm = vm0
    a("s_cmp_eq_u32 s6, 3\ns_cbranch_scc1 L_v3")
    if dvhp is not None:
        a("s_cmp_lg_u32 s79, 0\ns_cbranch_scc1 L_vhp")
    vphase(dv, False); a("s_branch L_vlast")
    if dvhp is not None:
        a("L_vhp:"); vphase(dvhp, False); a("s_branch L_vlast")
    a("L_v3:"); vphase(dv3, vslow)
    a("L_vlast:\ns_nop 1")
    roles()
    srd(16, 50, 448*3584); block_voff("v1", 3584)
    a(f"""s_min_u32 s30, s3, 6
    s_mul_i32 s100, s30, {64*3584}
    s_lshl_b32 s30, s7, 7
    s_add_u32 s100, s100, s30
    s_cmp_eq_u32 s3, 7
    s_cselect_b32 s18, 0, s18
    s_cmp_eq_u32 s28, 2
    s_cselect_b32 s18, 0, s18""")
    for jj in range(4):
        n = (4*(jj - 3)) % 16
        for k in range(4):
            a(f"v_mov_b32_dpp v{16+4*jj+k}, v{96+k} " + (f"row_ror:{n}" if n else "quad_perm:[0,1,2,3]") + f" row_mask:0xf bank_mask:{1<<jj:#x}")
    a("v_lshlrev_b32 v3, 3, v0")
    a("L_st_tail:")
    for i2 in range(4):
        a(f"s_waitcnt vmcnt({6-2*i2})")
        if i2 == 0: mark(67)
        if i2 == 3: mark(65)
        for j in range(8): a(f"v_perm_b32 v{32+4*j+i2}, v{64+8*i2+4+(j>>1)}, v{64+8*i2+(j>>1)}, {SELHI if j & 1 else SELLO}")
    for j in (0, 4, 1, 5, 2, 6, 3, 7):
        D = 100 + 4*(j >> 2)
        a(f"v_mfma_f32_16x16x32_bf16 {vr(D)}, {vr(16+4*(j&3))}, {vr(32+4*j)}, {vr(D)}")
    for h in range(2): a(f"v_add_f32_dpp v{108+h}, v{102+h}, v{100+h} row_ror:8 row_mask:0xf bank_mask:0x3")
    for h in range(2): a(f"v_add_f32_dpp v{108+h}, v{104+h}, v{106+h} row_ror:8 row_mask:0xf bank_mask:0xc")
    mark(66)
    for h in range(2): a(f"v_cvt_f64_f32 v[{112+2*h}:{113+2*h}], v{108+h}\nds_add_f64 v3, v[{112+2*h}:{113+2*h}] offset:{OACC+h*512}")
    guard(f"v_mov_b32 v4, 1\ns_mov_b64 exec, 1\nds_add_u32 v2, v4 offset:{ODONE}\ns_mov_b64 exec, -1")
    if diag: a("s_waitcnt lgkmcnt(0)")
    stamp(5)
    mark(64)
    Ls = a.label("up")
    if dry: a(f"s_cbranch_execz {Ls}")
    a("s_cmp_eq_u32 s28, 2\ns_cbranch_scc1 L_st_end\ns_cmp_eq_u32 s3, 7\ns_cbranch_scc1 L_st_end")
    load_block(W1, "v1", 16, "s100", 3584)
    a(f"{Ls}:")
    g_prep()
    if not dry: a("s_setprio 3")
    else: guard("s_setprio 3")
    g_stage()
    if dry: a("s_cbranch_execz L_svc_tail")
    a("L_st_end:"); finish()

    a.raw(".p2align 9")
    a("L_notstream:")
    mode['stream'] = False
    pro_roles()
    a("s_cmp_eq_u32 s3, 15\ns_cbranch_scc1 L_comm\ns_sub_u32 s3, s3, 8\ns_cmp_eq_u32 " + ("s28" if coop else "s79") + ", 1\ns_cbranch_scc0 L_svc_nh")
    block_voff("v1", 5376)
    a(f"s_mul_i32 s34, s3, {64*5376}\ns_lshl_b32 s30, s29, 7\ns_add_u32 s34, s34, s30\ns_setprio 2\ns_waitcnt lgkmcnt(0)")
    srd(68, 56, 448*5376)
    a.vm_reset()
    load_block(W2, "v1", 68, "s34", 5376, tag="wm")
    a("L_svc_nh:\ns_barrier\ns_waitcnt lgkmcnt(0)")
    ws_srd(); roles()
    a(f"""
    s_cmp_eq_u32 s79, 0
    s_cbranch_scc1 L_svc_w
    v_lshrrev_b32 v3, 4, v0
    v_lshlrev_b32 v3, 1, v3
    v_and_b32 v4, 1, v0
    v_add_u32 v3, v3, v4
    v_lshlrev_b32 v6, 4, v3
    s_lshl_b32 s30, s3, 7
    v_add_u32 v6, s30, v6
    v_bfe_u32 v7, v0, 1, 3
    v_lshlrev_b32 v31, 4, v0
    v_mul_u32_u24 v30, 896, v7
    v_add_u32 v30, v30, v6
    s_setprio 2
    s_cmp_eq_u32 s79, 2
    s_cbranch_scc1 L_svc_P
    """)
    def gw(tag):
        if warm:
            L = a.label("gw"); a(f"s_cbranch_execz {L}"); a.vm_wait(tag); a(f"{L}:")
        else: a.vm_wait(tag)
    def seg(name, ret):
        if warm: a(f"s_cbranch_execz {ret}\n{name}:")
    def warmup(entries, ret):
        if not warm: return
        a(f"s_cmp_ge_u32 s3, {len(entries)}\ns_cbranch_scc1 {ret}\ns_mov_b64 exec, 0")
        for k, e in enumerate(entries[:-1]): a(f"s_cmp_eq_u32 s3, {k}\ns_cbranch_scc1 {e}")
        a(f"s_branch {entries[-1]}\n{ret}:\ns_nop 7\ns_mov_b64 exec, -1")
    def gemv8_publish(Wb, Db, rowstride, off, p):
        for j in range(8): a(f"v_mfma_f32_16x16x32_bf16 {vr(Db+4*j)}, v[12:15], {vr(Wb+4*j)}, 0")
        a(f"s_lshl_b32 s30, s3, 11\nv_add_u32 v3, s30, v31")
        for half in range(2):
            for j in range(8):
                D = Db + 4*j
                if half == 0: a(f"v_add_f32_dpp v{16+j}, v{D+1}, v{D} row_ror:8 row_mask:0xf bank_mask:0x3")
                else: a(f"v_add_f32_dpp v{16+j}, v{D+2}, v{D+3} row_ror:8 row_mask:0xf bank_mask:0xc")
        a(f"""ds_write_b128 v3, v[16:19] offset:{RED}
        ds_write_b128 v3, v[20:23] offset:{RED+1024}
        v_mov_b32 v3, 1
        s_waitcnt lgkmcnt(0)""")
        seg(f"{p}_sX", f"{p}_ret")
        a(f"s_mov_b64 exec, 1\nds_add_u32 v2, v3 offset:{RC0}\ns_mov_b64 exec, -1\ns_cmp_lg_u32 s3, 0\ns_cbranch_scc1 {p}_done")
        a(f"v_lshrrev_b32 v4, 3, v0\nv_mul_u32_u24 v4, {rowstride}, v4\nv_and_b32 v5, 7, v0\nv_lshl_add_u32 v4, v5, 4, v4")
        lds_spin(RC0, 7, nap=False); stamp(7)
        if warm: a(f"{p}_sR:")
        for w in range(7):
            a(f"ds_read_b128 {vr(W0+8*w)}, v31 offset:{RED+w*2048}\nds_read_b128 {vr(W0+8*w+4)}, v31 offset:{RED+w*2048+1024}")
        a(f"s_lshl_b32 s33, s29, 7\ns_add_u32 s33, s33, {off}\ns_add_u32 s32, s33, {DUAL}")
        for w, n in ((1, 10), (3, 6), (5, 2)):
            a(f"s_waitcnt lgkmcnt({n})")
            for j in range(0, 8, 2): a(f"v_pk_add_f32 v[{W0+8*(w-1)+j}:{W0+8*(w-1)+j+1}], v[{W0+8*(w-1)+j}:{W0+8*(w-1)+j+1}], v[{W0+8*w+j}:{W0+8*w+j+1}]")
        a("s_waitcnt lgkmcnt(0)")
        for x, y in ((0, 2), (4, 6), (0, 4)):
            for j in range(0, 8, 2): a(f"v_pk_add_f32 v[{W0+8*x+j}:{W0+8*x+j+1}], v[{W0+8*x+j}:{W0+8*x+j+1}], v[{W0+8*y+j}:{W0+8*y+j+1}]")
        for d in range(4): a(f"v_cvt_pk_bf16_f32 v{24+d}, v{W0+2*d}, v{W0+2*d+1}")
        for d in range(4): a(f"v_xor_b32 v{16+d}, {TAG}, v{24+d}")
        seg(f"{p}_sY", f"{p}_ret")
        a(f"buffer_store_dwordx4 v[24:27], v4, {WS}, s33 offen sc1\nbuffer_store_dwordx4 v[16:19], v4, {WS}, s32 offen sc1\n{p}_done:")

    if coop:
        a("s_cmp_eq_u32 s28, 1\ns_cbranch_scc1 L_svc_H")
        block_voff("v1", 5376)
        a(f"s_mul_i32 s34, s3, {64*5376}\ns_lshl_b32 s30, s29, 7\ns_add_u32 s34, s34, s30")
        srd(68, 56, 448*5376)
        lds_spin(F1, 1)
        vm0 = list(a.vm); load_block(W2, "v1", 68, "s34", 5376, pace=dq); a.vm = vm0
        a("L_svc_H:")
    srd(8, 54, 7168)
    a.vmem(f"buffer_load_dwordx4 v[8:11], v30, s[8:11], 0 offen", "c")
    tag_load()
    if 'hst' in exp: stamp(2)
    lds_inc(CRIT)
    warmup(["H_s0", "H_s1", "H_s2", "H_sR"], "H_ret")
    if warm: a("H_s0:")
    gw("c")
    for d in range(4): unpack2(f"v{16+2*d}", f"v{17+2*d}", f"v{8+d}")
    T = lambda i: 24+i if i < 4 else 4+i
    for i in range(8): a(f"v_mul_f32 v{T(i)}, {f32(-math.log2(math.e))}, v{16+i}")
    for i in range(8): a(f"v_exp_f32 v{T(i)}, v{T(i)}")
    for i in range(8): a(f"v_add_f32 v{T(i)}, 1.0, v{T(i)}")
    for i in range(8): a(f"v_rcp_f32 v{T(i)}, v{T(i)}")
    for i in range(8): a(f"v_mul_f32 v{16+i}, v{16+i}, v{T(i)}")
    for d in range(4): a(f"v_cvt_pk_bf16_f32 v{12+d}, v{16+2*d}, v{17+2*d}")
    seg("H_sT", "H_ret")
    tag_wait(); lds_inc(TAGC)
    if warm: a("H_s1:")
    if 'hst' in exp: stamp(4)
    transpose_inplace(W2)
    seg("H_s2", "H_ret")
    gemv8_publish(W2, W1, 5376, MOD_OFF, "H")
    stamp(1)
    if 'hst' in exp: a("s_waitcnt lgkmcnt(0)\ns_mov_b32 s76, s86\ns_mov_b32 s77, s88\ns_mov_b32 s83, s94")
    a("s_branch L_svc_w")

    a("L_svc_P:")
    a.vm_reset()
    srd(72, 42, 448*8192); srd(96, 36, 7168)
    a.vmem("buffer_load_dwordx4 v[8:11], v30, s[96:99], 0 offen", "x")
    tag_load()
    block_voff("v1", 8192)
    a(f"s_mul_i32 s34, s3, {64*8192}\ns_lshl_b32 s30, s29, 7\ns_add_u32 s34, s34, s30")
    if coop:
        tag_wait(); lds_inc(TAGC); lds_spin(F1, 1)
        load_block(W2, "v1", 72, "s34", 8192, tag="q0", pace=dq)
    else:
        load_block(W2, "v1", 72, "s34", 8192, tag="q0", pace=dq)
        tag_wait(); lds_inc(TAGC)
    def red8(v):
        a(f"v_add_f32_dpp {v}, {v}, {v} quad_perm:[1,0,3,2] row_mask:0xf bank_mask:0xf")
        xrow_reduce("v_add_f32", v, "v3")
    for d in range(4): unpack2(f"v{16+2*d}", f"v{17+2*d}", f"v{8+d}")
    a("v_add_f32 v24, v16, v17")
    for i in range(2, 8): a(f"v_add_f32 v24, v24, v{16+i}")
    red8("v24")
    a(f"v_mul_f32 v24, {f32(1/64)}, v24\nv_mov_b32 v25, 0")
    for i in range(8): a(f"v_sub_f32 v3, v{16+i}, v24\nv_fmac_f32 v25, v3, v3")
    red8("v25")
    a(f"""s_lshl_b32 s30, s3, 3
    v_lshlrev_b32 v26, 6, v7
    v_add_u32 v3, s30, v26
    ds_write_b64 v3, v[24:25] offset:{XST}
    v_lshrrev_b32 v3, 4, v0
    v_and_b32 v4, 1, v0
    v_lshl_add_u32 v27, v3, 1, v4
    v_lshl_add_u32 v26, v27, 3, v26
    v_cmp_gt_u32 vcc, 7, v27
    v_mov_b32 v4, {f32(64.0)}
    v_cndmask_b32 v27, 0, v4, vcc
    s_waitcnt lgkmcnt(0)""")
    lds_inc(XC); lds_spin(XC, 7, nap=False)
    a(f"ds_read_b64 v[28:29], v26 offset:{XST}\ns_waitcnt lgkmcnt(0)\nv_mov_b32 v24, v28")
    red8("v24")
    a(f"v_mul_f32 v24, {f32(1/7)}, v24\nv_sub_f32 v28, v28, v24\nv_mul_f32 v28, v28, v28\nv_fma_f32 v25, v28, v27, v29")
    red8("v25")
    a(f"v_mul_f32 v25, {f32(1/448)}, v25")
    round2("v24", "v25", "v3")
    a(f"v_add_f32 v25, {f32(1e-5)}, v25"); round1("v25")
    a("v_sqrt_f32 v25, v25"); round1("v25")
    a("v_rcp_f32 v25, v25")
    for i in range(8): a(f"v_sub_f32 v{16+i}, v{16+i}, v24")
    for d in range(4): round2(f"v{16+2*d}", f"v{17+2*d}", "v3")
    for i in range(8): a(f"v_mul_f32 v{16+i}, v{16+i}, v25")
    for d in range(4): a(f"v_cvt_pk_bf16_f32 v{8+d}, v{16+2*d}, v{17+2*d}")
    warmup(["Q_s0", "Q_s2", "Q_sR"], "Q_ret")
    a.vm_wait("q0"); transpose_inplace(W2)
    stamp(5)
    if ssa: sprobe(f"s_lshl_b32 s30, s3, 7\ns_add_u32 s30, s30, {MOD_OFF+7*5376}", [0, 896], [12, 13, 14, 15])
    stamp(6)
    a(f"v_mul_u32_u24 v30, 5376, v7\nv_add_u32 v30, v30, v6\ns_mov_b32 s32, {DUAL}")
    poll_dual([f"buffer_load_dwordx4 v[16:19], v30, {WS}, 0 offen offset:{MOD_OFF} sc1",
               f"buffer_load_dwordx4 v[20:23], v30, {WS}, 0 offen offset:{MOD_OFF+896} sc1",
               f"buffer_load_dwordx4 {vr(W0)}, v30, {WS}, s32 offen offset:{MOD_OFF} sc1",
               f"buffer_load_dwordx4 {vr(W0+4)}, v30, {WS}, s32 offen offset:{MOD_OFF+896} sc1"],
              [(16+k, W0+k) for k in range(8)])
    stamp(1)
    if warm: a("Q_s0:")
    for d in range(4):
        unpack2("v28", "v29", f"v{20+d}")
        a("v_add_f32 v28, 1.0, v28\nv_add_f32 v29, 1.0, v29"); round2("v28", "v29", "v3")
        unpack2("v24", "v25", f"v{8+d}")
        a("v_mul_f32 v24, v24, v28\nv_mul_f32 v25, v25, v29"); round2("v24", "v25", "v3")
        unpack2("v28", "v29", f"v{16+d}")
        a(f"v_add_f32 v24, v24, v28\nv_add_f32 v25, v25, v29\nv_cvt_pk_bf16_f32 v{12+d}, v24, v25")
    seg("Q_s2", "Q_ret")
    gemv8_publish(W2, W1, 8192, Q_OFF, "Q")
    stamp(2)

    a(f"L_svc_w:\ns_setprio {sprio}\ns_waitcnt vmcnt(0)")
    a.vm_reset()
    srd(8, 44, 4096*896); srd(12, 52, 1792*896); srd(16, 48, 448*3584)
    if 'contig' in exp: block_voff("v1", 128); block_voff("v8", 128)
    else: block_voff("v1", 896); block_voff("v8", 3584)
    S896, S3584 = (128, 128) if 'contig' in exp else (896, 3584)
    if 'now' in exp: a("s_branch L_svc_rdy")
    if wpre: lds_spin(FC, 1)
    a(f"""s_lshl_b32 s30, s4, 9
    s_lshl_b32 s31, s6, 6
    s_add_u32 s30, s30, s31
    s_mul_i32 s34, s30, 896
    s_lshl_b32 s31, s3, 7
    s_add_u32 s34, s34, s31
    s_add_u32 s35, s34, {256*896}
    s_mul_i32 s100, s7, {64*896}
    s_add_u32 s100, s100, s31""")
    if 'contig' in exp: a("s_lshl_b32 s30, s4, 2\ns_add_u32 s30, s30, s6\ns_mul_i32 s34, s30, 114688\ns_lshl_b32 s30, s3, 14\ns_add_u32 s34, s34, s30\ns_add_u32 s35, s34, 8192\ns_mul_i32 s100, s7, 57344\ns_lshl_b32 s30, s3, 13\ns_add_u32 s100, s100, s30")
    a("s_mov_b32 s77, 0\ns_cmp_eq_u32 s28, 2\ns_cbranch_scc0 L_svc_mlp")
    load_block(W0, "v1", 8, "s34", S896, pace=dwp, tag="wo0", ff=fastfin)
    load_block(W1, "v1", 8, "s35", S896, pace=dwp, tag="wo1", ff=fastfin, fill={min(int(dwp+0.99), 7): lambda: (a.vm_wait("wo0"), transpose_inplace(W0))})
    a.vm_wait("wo1"); transpose_inplace(W1)
    a("s_branch L_svc_rdy\nL_svc_mlp:")
    a.vm_reset()
    load_block(W0, "v1", 8, "s34", S896, pace=dw, tag="wo0", ff=fastfin)
    load_block(W1, "v1", 8, "s35", S896, pace=dw, tag="wo1", ff=fastfin, fill={int(dw+0.99): lambda: (a.vm_wait("wo0"), transpose_inplace(W0))})
    a(f"""s_mul_i32 s101, s3, {64*3584}
    s_lshl_b32 s30, s7, 7
    s_add_u32 s101, s101, s30
    s_lshl_b32 s33, s3, 13
    s_add_u32 s33, s33, {GU}""")
    if late:
        a.vm_wait("wo1"); transpose_inplace(W1)
        a("s_mov_b32 s76, s100\nv_mov_b32 v10, v1")
    else:
        dma_block("s33", "v8", 16, "s101", S3584, pace=dw, tag="wg", ff=fastfin, fill={int(dw+0.99): lambda: (a.vm_wait("wo1"), transpose_inplace(W1))})
        load_block(W2, "v1", 12, "s100", S896, pace=dw, tag="wd", ff=fastfin)
        a.vm_wait("wg")
    a("L_svc_rdy:")
    a(f"""v_lshrrev_b32 v3, 4, v0
    v_and_b32 v4, 1, v0
    v_lshl_add_u32 v4, v3, 1, v4
    v_bfe_u32 v5, v0, 1, 1
    v_lshlrev_b32 v5, 5, v5
    v_add_u32 v9, v4, v5
    v_bfe_u32 v5, v0, 2, 1
    v_lshl_add_u32 v9, v5, 3, v9
    v_lshlrev_b32 v9, 3, v9
    v_and_b32 v5, 7, v0
    v_lshlrev_b32 v5, 5, v5
    v_lshrrev_b32 v11, 5, v0
    v_lshl_add_u32 v11, v11, 4, v5
    s_lshl_b32 s30, s5, 5
    s_lshl_b32 s31, s4, 2
    s_add_u32 s31, s31, s6
    s_add_u32 s31, s31, s30
    s_mul_i32 s34, s31, 1792
    s_lshl_b32 s33, s3, 8
    s_add_u32 s34, s34, s33
    s_add_u32 s34, s34, {PA_OFF}
    s_mul_i32 s35, s30, 1792
    s_add_u32 s35, s35, s33
    s_add_u32 s35, s35, {PA_OFF}
    s_mul_i32 s100, s5, 28
    s_add_u32 s100, s100, s7
    s_mul_i32 s100, s100, 1792
    s_add_u32 s100, s100, s33
    s_add_u32 s100, s100, {PD_OFF}
    v_mul_u32_u24 v1, 1792, v3
    v_and_b32 v4, 15, v0
    v_lshl_add_u32 v1, v4, 4, v1
    v_lshl_add_u32 v8, v4, 2, v3
    s_lshl_b32 s30, s3, 6
    v_add_u32 v8, s30, v8""")
    for r in range(1, 8): a(f"s_add_u32 s{68+r}, s35, {r*4*1792}")
    a("s_mov_b32 s68, s35")
    stamp(3)
    a("s_setprio 3")
    lds_spin(ODONE, 8, nap=False)
    a("L_svc_tail:")
    if 'tst' in exp: stamp(1)
    a(f"""ds_read2_b64 v[20:23], v9 offset0:{OACC//8} offset1:{OACC//8+16}
    ds_read2_b64 v[24:27], v9 offset0:{OACC//8+64} offset1:{OACC//8+80}
    s_waitcnt lgkmcnt(1)
    v_cvt_f32_f64 v20, v[20:21]
    v_cvt_f32_f64 v22, v[22:23]
    s_waitcnt lgkmcnt(0)
    v_cvt_f32_f64 v24, v[24:25]
    v_cvt_pk_bf16_f32 v12, v20, v22
    v_cvt_f32_f64 v26, v[26:27]
    v_cvt_pk_bf16_f32 v16, v24, v26""")
    for A0 in (12, 16):
        for d in range(1, 4): a(f"v_mov_b32_dpp v{A0+d}, v{A0} row_ror:{16-2*d} row_mask:0xf bank_mask:0xf")
    if 'tst' in exp: stamp(3)
    for j in range(8): a(f"v_mfma_f32_16x16x32_bf16 {vr(W0+4*j)}, v[12:15], {vr(W0+4*j)}, 0")
    for j in range(8): a(f"v_mfma_f32_16x16x32_bf16 {vr(W0+4*j)}, v[16:19], {vr(W1+4*j)}, {vr(W0+4*j)}")
    for j in range(8): a(f"v_add_f32_dpp v{20+(j&3)}, v{W0+4*j+1}, v{W0+4*j} row_ror:8 row_mask:{1<<(2*(j>>2)):#x} bank_mask:0x3")
    if 'tst' in exp: stamp(2)
    guard(setexec(0x000000FF000000FF) + f"\nbuffer_store_dwordx4 v[20:23], v11, {WS}, s34 offen sc1\ns_mov_b64 exec, -1")
    stamp(4)
    Lp = a.label("notP")
    if dry: a(f"s_cbranch_execz {Lp}")
    a(f"s_cmp_lg_u32 s28, 2\ns_cbranch_scc1 {Lp}"); finish(); a(f"{Lp}:")
    g1 = lambda r: f"buffer_load_dwordx4 {vr(W0+4*r)}, v1, {WS}, s{68+r} offen sc1"
    gl = "\n".join(g1(r) for r in range(8))
    guard("s_barrier\n" + gl)
    a(f"""v_lshlrev_b32 v3, 1, v8
    ds_read_u16 v23, v3 offset:{MODL}
    ds_read_u16 v24, v3 offset:{XL}
    v_lshlrev_b32 v25, 2, v8
    v_lshrrev_b32 v26, 5, v0
    v_lshlrev_b32 v26, 2, v26
    s_lshl_b32 s30, s3, 3
    v_add_u32 v26, s30, v26
    v_lshrrev_b32 v12, 4, v0
    v_and_b32 v4, 1, v0
    v_lshl_add_u32 v12, v12, 1, v4
    v_bfe_u32 v4, v0, 1, 2
    v_lshl_add_u32 v12, v4, 4, v12
    v_lshlrev_b32 v12, 3, v12
    v_add_u32 v12, {GUACC}, v12
    s_waitcnt lgkmcnt(0)
    v_lshlrev_b32 v23, 16, v23
    v_lshlrev_b32 v24, 16, v24
    s_mov_b32 s31, 0""")
    L = a.label("pa"); D = a.label("pad")
    if late:
        Ld = a.label("dn")
        if dry: a(f"s_cbranch_execz {Ld}")
        load_block(W2, "v10", 12, "s76", S896)
        a(f"{Ld}:\ns_waitcnt vmcnt(8)\ns_branch {L}_in")
    else:
        a("s_waitcnt vmcnt(9)"); transpose_inplace(W2)
    a(f"{L}:\ns_waitcnt vmcnt(0)\n{L}_in:")
    check(range(W0, W0+32), "v3")
    a(f"s_cbranch_vccz {D}\ns_add_u32 s31, s31, 1\ns_cmp_ge_u32 s31, {SPIN_MAX}\ns_cbranch_scc1 {D}")
    if selp:
        for r in range(8):
            K = a.label("ok"); check(range(W0+4*r, W0+4*r+4), "v3")
            a(f"s_cbranch_vccz {K}\n{g1(r)}\n{K}:")
    else: a(gl)
    a(f"s_branch {L}\n{D}:")
    stamp(5)
    for st in (16, 8, 4):
        for k in range(0, st, 2): a(f"v_pk_add_f32 v[{W0+k}:{W0+k+1}], v[{W0+k}:{W0+k+1}], v[{W0+st+k}:{W0+st+k+1}]")
    a(f"""v_permlane32_swap_b32 v{W0}, v{W0+2}
    v_permlane32_swap_b32 v{W0+1}, v{W0+3}
    v_add_f32 v{W0}, v{W0}, v{W0+2}
    v_add_f32 v{W0+1}, v{W0+1}, v{W0+3}
    v_permlane16_swap_b32 v{W0}, v{W0+1}
    v_add_f32 v27, v{W0}, v{W0+1}""")
    round1("v27"); a("v_mul_f32 v27, v27, v23"); round1("v27"); a("v_add_f32 v27, v27, v24"); round1("v27")
    a(f"""ds_write_b32 v25, v27 offset:{X1L}
    v_readfirstlane_b32 s30, v27
    v_subrev_f32 v28, s30, v27
    v_mul_f32 v29, v28, v28
    v_permlane32_swap_b32 v28, v29
    v_add_f32 v28, v28, v29""")
    row_reduce("v_add_f32", "v28")
    a("v_mov_b32 v29, v28\nv_permlane16_swap_b32 v28, v29\nv_add_f32 v28, v28, v29")
    a(f"ds_write_b32 v26, v28 offset:{STL}\ns_waitcnt lgkmcnt(0)")
    guard("s_barrier")
    stamp(7)
    if late: a("s_waitcnt vmcnt(0)"); transpose_inplace(W2)
    guard("s_barrier")
    a(f"ds_read2_b64 v[24:27], v12 offset0:0 offset1:8\nds_read2_b64 v[28:31], v12 offset0:64 offset1:72\ns_waitcnt lgkmcnt(1)")
    a("v_cvt_f32_f64 v24, v[24:25]\nv_cvt_f32_f64 v25, v[26:27]")
    round2("v24", "v25", "v3")
    a(f"v_mul_f32 v24, {f32(-math.log2(math.e))}, v24\nv_mul_f32 v25, {f32(-math.log2(math.e))}, v25\nv_exp_f32 v24, v24\nv_exp_f32 v25, v25\ns_waitcnt lgkmcnt(0)")
    a("v_cvt_f32_f64 v28, v[28:29]\nv_cvt_f32_f64 v29, v[30:31]")
    a("v_cvt_pk_bf16_f32 v3, v28, v29\nv_add_f32 v24, 1.0, v24\nv_add_f32 v25, 1.0, v25\nv_rcp_f32 v24, v24\nv_rcp_f32 v25, v25")
    unpack2("v28", "v29", "v3"); round2("v24", "v25", "v3")
    a("v_mul_f32 v24, v24, v28\nv_mul_f32 v25, v25, v29\nv_cvt_pk_bf16_f32 v24, v24, v25")
    for d in range(1, 4): a(f"v_mov_b32_dpp v{24+d}, v24 row_ror:{16-2*d} row_mask:0xf bank_mask:0xf")
    for j in range(8): a(f"v_mfma_f32_16x16x32_bf16 {vr(W2+4*j)}, v[24:27], {vr(W2+4*j)}, 0")
    for j in range(8): a(f"v_add_f32_dpp v{28+(j&3)}, v{W2+4*j+1}, v{W2+4*j} row_ror:8 row_mask:{1<<(2*(j>>2)):#x} bank_mask:0x3")
    guard(setexec(0x000000FF000000FF) + f"\nbuffer_store_dwordx4 v[28:31], v11, {WS}, s100 offen sc1\ns_mov_b64 exec, -1")
    stamp(6)
    if dry: a("s_cbranch_execz L_dry2")
    finish()

    mode['stream'] = False
    a(f"""L_comm:
    v_mov_b32 v4, 0
    v_mov_b32 v5, 0
    v_mov_b32 v6, 0
    v_mov_b32 v7, 0
    v_lshlrev_b32 v1, 4, v0
    ds_write_b128 v1, v[4:7]
    ds_write_b128 v1, v[4:7] offset:1024
    ds_write_b128 v1, v[4:7] offset:2048
    s_setprio 3
    s_waitcnt lgkmcnt(0)
    s_barrier""")
    roles(); ws_srd(); tag_load('v12')
    if bal:
        a(f"""s_cmp_eq_u32 s6, 3
        s_cbranch_scc1 L_c_nobal
        s_lshl_b32 s30, s5, 3
        s_add_u32 s30, s30, s4
        s_lshl_b32 s30, s30, 22
        s_add_u32 s30, s30, {0x300000 + (4*balt + 3)*32768}
        s_add_u32 s8, s38, s30
        s_addc_u32 s9, s39, 0
        s_mov_b32 s10, 0x8000
        s_mov_b32 s11, 0x20000
        s_mul_i32 s30, s6, {86*128}
        v_lshlrev_b32 v3, 7, v0""")
        for k in range(bal):
            if k: a(f"s_add_u32 s8, s8, {4*32768}\ns_addc_u32 s9, s9, 0")
            a(f"buffer_load_dword v29, v3, s[8:11], s30 offen\ns_add_u32 s31, s30, 8192\ns_mov_b64 exec, 0x3fffff\nbuffer_load_dword v30, v3, s[8:11], s31 offen\ns_mov_b64 exec, -1")
        a("L_c_nobal:")
    if coop:
        srd(68, 56, 448*5376); srd(72, 42, 448*8192)
        a(f"""s_lshl_b32 s30, s6, 3
        s_add_u32 s30, s30, s5
        s_mul_i32 s30, s30, 14
        v_and_b32 v3, 7, v0
        v_add_u32 v3, s30, v3
        v_lshrrev_b32 v4, 3, v0
        s_cmp_ge_u32 s4, 2
        s_cselect_b32 s31, 6, 2
        s_cselect_b32 s32, 14, 0
        s_add_u32 s32, s32, s4
        v_mul_u32_u24 v5, s31, v4
        v_add_u32 v5, s32, v5
        v_mul_u32_u24 v6, 5376, v3
        v_lshl_add_u32 v6, v5, 7, v6
        v_cmp_gt_u32 vcc, 42, v5
        v_mov_b32 v7, 0x7fffffff
        v_cndmask_b32 v6, v7, v6, vcc
        s_mov_b32 s30, {8*5376}
        buffer_load_dword v25, v6, s[68:71], 0 offen
        buffer_load_dword v26, v6, s[68:71], s30 offen
        s_lshl_b32 s30, s4, 10
        s_add_u32 s31, s30, {8*8192}
        v_lshlrev_b32 v3, 13, v3
        v_lshl_add_u32 v3, v4, 7, v3
        buffer_load_dword v27, v3, s[72:75], s30 offen
        buffer_load_dword v28, v3, s[72:75], s31 offen""")
        if not wpre: a(f"s_waitcnt vmcnt(0)\nv_mov_b32 v3, 1\nds_write_b32 v2, v3 offset:{F1}")
    if wpre:
        srd(8, 44, 4096*896); srd(12, 52, 1792*896); srd(16, 48, 448*3584); srd(20, 50, 448*3584)
        a(f"""v_lshlrev_b32 v3, 7, v0
        s_lshl_b32 s30, s4, 9
        s_lshl_b32 s31, s6, 6
        s_add_u32 s30, s30, s31
        s_lshl_b32 s31, s5, 3
        s_add_u32 s30, s30, s31
        s_mul_i32 s30, s30, 896
        s_add_u32 s32, s30, {256*896}
        s_mov_b32 exec_hi, 0xffffff
        buffer_load_dword v20, v3, s[8:11], s30 offen
        buffer_load_dword v21, v3, s[8:11], s32 offen
        s_cmp_eq_u32 s28, 2
        s_cbranch_scc1 L_c_nopre
        s_lshl_b32 s30, s7, 6
        s_add_u32 s30, s30, s31
        s_mul_i32 s30, s30, 896
        buffer_load_dword v22, v3, s[12:15], s30 offen
        v_mul_u32_u24 v3, 3584, v0
        s_mul_i32 s30, s5, {56*3584}
        s_lshl_b32 s31, s7, 7
        s_add_u32 s30, s30, s31
        buffer_load_dword v23, v3, s[16:19], s30 offen
        buffer_load_dword v24, v3, s[20:23], s30 offen
        s_waitcnt vmcnt(5)
        s_branch L_c_pre2
        L_c_nopre:
        s_waitcnt vmcnt(2)
        L_c_pre2:
        s_mov_b64 exec, -1
        v_mov_b32 v3, 1
        ds_write_b32 v2, v3 offset:{F1}""")
    a(f"""v_mov_b32 v4, -1
    v_mov_b32 v5, -1
    v_mov_b32 v6, -1
    v_mov_b32 v7, -1
    s_lshl_b32 s34, s5, 3
    s_add_u32 s34, s34, s4
    s_lshl_b32 s30, s34, 13
    s_lshl_b32 s31, s6, 11
    s_add_u32 s30, s30, s31
    s_add_u32 s30, s30, {SC_OFF}
    buffer_store_dwordx4 v[4:7], v1, {WS}, s30 offen sc1
    buffer_store_dwordx4 v[4:7], v1, {WS}, s30 offen offset:1024 sc1
    s_lshl_b32 s30, s5, 5
    s_lshl_b32 s31, s4, 2
    s_add_u32 s30, s30, s31
    s_add_u32 s30, s30, s6
    s_mul_i32 s30, s30, 1792
    s_add_u32 s30, s30, {PA_OFF}
    s_mul_i32 s31, s5, 28
    s_add_u32 s31, s31, s7
    s_mul_i32 s31, s31, 1792
    s_add_u32 s31, s31, {PD_OFF}
    s_cmp_eq_u32 s28, 2
    s_cselect_b32 s31, s30, s31
    buffer_store_dwordx4 v[4:7], v1, {WS}, s30 offen sc1
    buffer_store_dwordx4 v[4:7], v1, {WS}, s31 offen sc1
    s_mov_b32 exec_hi, 0xffff
    buffer_store_dwordx4 v[4:7], v1, {WS}, s30 offen offset:1024 sc1
    buffer_store_dwordx4 v[4:7], v1, {WS}, s31 offen offset:1024 sc1
    s_lshl_b32 s30, s34, 9
    s_lshl_b32 s31, s6, 7
    s_add_u32 s30, s30, s31
    s_add_u32 s30, s30, {ST_OFF}
    s_mov_b64 exec, 0xff
    buffer_store_dwordx4 v[4:7], v1, {WS}, s30 offen sc1
    s_mov_b64 exec, 1
    s_lshl_b32 s30, s5, 5
    s_lshl_b32 s31, s4, 2
    s_add_u32 s30, s30, s31
    s_add_u32 s30, s30, s6
    s_lshl_b32 s30, s30, 2
    s_add_u32 s30, s30, {CERT_OFF}""")
    a("s_cmp_eq_u32 s79, 0\ns_cbranch_scc1 L_c_cert")
    lds_spin(TAGC, 7, st="s31")
    a("L_c_cert:\ns_waitcnt vmcnt(0)")
    tag_wait("v12", wait=False)
    a(f"""v_mov_b32 v3, 1
    ds_write_b32 v2, v3 offset:{FC}
    v_mov_b32 v3, {TAG}
    buffer_store_dword v3, v2, {WS}, s30 offen sc1
    s_mov_b64 exec, -1""")
    stamp(1)
    if 'nocomm' in exp: a(f"v_mov_b32 v3, 1\nds_write_b32 v2, v3 offset:{FQ}\nds_write_b32 v2, v3 offset:{FP}\ns_branch L_c_skip")
    if sq and sq2 and 'noq' not in exp:
        sprobe(f"s_lshl_b32 s30, s5, 13\ns_lshl_b32 s31, s4, 10\ns_add_u32 s30, s30, s31\ns_add_u32 s30, s30, {Q_OFF}", [128*3], [8, 9])
    if sq and 'noq' not in exp:
        sprobe(f"s_lshl_b32 s30, s5, 13\ns_lshl_b32 s31, s4, 10\ns_add_u32 s30, s30, s31\ns_add_u32 s30, s30, {Q_OFF}", [128*k for k in range(8)], list(range(8, 24)))
    a(f"s_lshl_b32 s30, s5, 13\ns_lshl_b32 s31, s4, 10\ns_add_u32 s30, s30, s31\ns_add_u32 s30, s30, {Q_OFF}\ns_add_u32 s32, s30, {DUAL}")
    if 'noq' not in exp: poll_dual([f"buffer_load_dwordx4 v[12:15], v1, {WS}, s30 offen sc1", f"buffer_load_dwordx4 v[16:19], v1, {WS}, s32 offen sc1"], [(12+k, 16+k) for k in range(4)], cnt="s33")
    a(f"ds_write_b128 v1, v[12:15] offset:{QL}\nv_mov_b32 v3, 1\ns_waitcnt lgkmcnt(0)\nds_write_b32 v2, v3 offset:{FQ}")
    stamp(2)
    a(f"""v_and_b32 v3, 7, v0
    v_lshlrev_b32 v3, 4, v3
    s_lshl_b32 s30, s5, 7
    v_add_u32 v3, s30, v3
    s_cmp_eq_u32 s2, 0
    s_cselect_b64 vcc, -1, 0
    v_cndmask_b32 v10, v3, v1, vcc
    v_mov_b32 v16, 0
    s_mov_b32 s30, {CERT_OFF}""")
    L = a.label("cert"); D = a.label("certd")
    a(f"""s_mov_b32 s33, 0
    {L}:
    buffer_load_dwordx4 v[12:15], v10, {WS}, s30 offen sc1
    s_waitcnt vmcnt(0)
    v_xor_b32 v12, {TAG}, v12
    v_xor_b32 v13, {TAG}, v13
    v_xor_b32 v14, {TAG}, v14
    v_xor_b32 v15, {TAG}, v15
    v_or3_b32 v12, v12, v13, v14
    v_or_b32 v12, v12, v15
    v_cmp_ne_u32 vcc, 0, v12
    s_cbranch_vccz {D}
    s_add_u32 s33, s33, 1
    s_cmp_lt_u32 s33, {SPIN_MAX}
    s_cbranch_scc1 {L}
    {D}:
    s_cmp_lg_u32 s2, 0
    s_cbranch_scc1 L_c_notag
    v_mov_b32 v3, {TAG}
    s_mov_b32 s30, {XN_OFF}
    s_mov_b64 exec, 1
    buffer_store_dword v3, v2, {WS}, s30 offen sc1
    s_mov_b64 exec, -1
    L_c_notag:""")
    stamp(3)
    if 'nodry' in exp: a("s_branch L_dry3")
    if dry: a("s_mov_b64 exec, 0\ns_branch L_st_tail\nL_dry2:\ns_branch L_final\nL_dry3:\ns_nop 7\ns_mov_b64 exec, -1")
    lds_spin(TRIG if trig else KDONE, 8)
    a(f"""s_lshl_b32 s34, s5, 3
    s_add_u32 s34, s34, s4
    s_lshl_b32 s30, s34, 13
    s_add_u32 s30, s30, {SC_OFF}
    s_add_u32 s32, s30, 4096
    s_lshl_b32 s35, s34, 9
    s_add_u32 s35, s35, {ST_OFF}
    v_and_b32 v3, 31, v0
    v_lshlrev_b32 v8, 4, v3""")
    if 'nosc' in exp: pass
    elif probe:
        poll([f"buffer_load_dwordx4 v[12:15], v8, {WS}, s35 offen sc1"], range(12, 16), cnt="s33")
        poll([f"buffer_load_dwordx4 {vr(32+4*k)}, v1, {WS}, {'s30' if k < 4 else 's32'} offen offset:{(k&3)*1024} sc1" for k in range(8)], range(32, 64), cnt="s33")
    else:
        poll([f"buffer_load_dwordx4 v[12:15], v8, {WS}, s35 offen sc1"] +
             [f"buffer_load_dwordx4 {vr(32+4*k)}, v1, {WS}, {'s30' if k < 4 else 's32'} offen offset:{(k&3)*1024} sc1" for k in range(8)],
             list(range(12, 16)) + list(range(32, 64)), cnt="s33")
    stamp(4)
    for k in range(8): a(f"ds_write_b128 v1, {vr(32+4*k)} offset:{SCL+k*1024}")
    a("v_mov_b32 v16, v12\nv_mov_b32 v18, v14")
    for n in (1, 2, 4, 8):
        for v in ("v16", "v18"): a(f"v_max_f32_dpp {v}, {v}, {v} row_ror:{n} row_mask:0xf bank_mask:0xf")
    for v, t in (("v16", "v3"), ("v18", "v4")): a(f"v_mov_b32 {t}, {v}\nv_permlane16_swap_b32 {t}, {v}\nv_max_f32 {v}, {v}, {t}")
    a(f"""v_sub_f32 v12, v12, v16
    v_sub_f32 v14, v14, v18
    v_mul_f32 v12, {CEXP}, v12
    v_mul_f32 v14, {CEXP}, v14
    v_exp_f32 v12, v12
    v_exp_f32 v14, v14
    v_mul_f32 v17, v12, v13
    v_mul_f32 v19, v14, v15""")
    for n in (1, 2, 4, 8):
        for v in ("v17", "v19"): a(f"v_add_f32_dpp {v}, {v}, {v} row_ror:{n} row_mask:0xf bank_mask:0xf")
    for v, t in (("v17", "v3"), ("v19", "v4")): a(f"v_mov_b32 {t}, {v}\nv_permlane16_swap_b32 {t}, {v}\nv_add_f32 {v}, {v}, {t}")
    a(f"""v_rcp_f32 v17, v17
    v_rcp_f32 v19, v19
    v_mul_f32 v16, {CEXP}, v16
    v_mul_f32 v18, {CEXP}, v18
    v_mov_b32 v3, 1
    ds_write_b128 v2, v[16:19] offset:{MS}
    s_waitcnt lgkmcnt(0)
    ds_write_b32 v2, v3 offset:{FP}""")
    a("s_cmp_eq_u32 s28, 2\ns_cbranch_scc1 L_c_nomodg")
    if 'nomod' in exp: a("s_branch L_c_nomodg")
    srd(96, 36, 7168)
    a(f"""s_mul_i32 s30, s5, 896
    s_mov_b32 exec_hi, 0xffffff
    buffer_load_dwordx4 v[28:31], v1, s[96:99], s30 offen
    s_mov_b32 exec_hi, -1
    s_mul_i32 s30, s5, 5376
    s_add_u32 s30, s30, {MOD_OFF+1792}
    s_add_u32 s32, s30, {DUAL}
    v_and_b32 v3, 31, v0
    v_lshlrev_b32 v8, 4, v3""")
    poll_dual([f"buffer_load_dwordx4 {vr(12+4*k)}, {'v1' if k < 3 else 'v8'}, {WS}, s30 offen offset:{k*1024} sc1" for k in range(4)] +
              [f"buffer_load_dwordx4 {vr(32+4*k)}, {'v1' if k < 3 else 'v8'}, {WS}, s32 offen offset:{k*1024} sc1" for k in range(4)],
              [(12+k, 32+k) for k in range(16)], cnt="s33")
    for k in range(4): a(f"ds_write_b128 {'v1' if k < 3 else 'v8'}, {vr(12+4*k)} offset:{MODL+k*1024}")
    a(f"s_mov_b32 exec_hi, 0xffffff\nds_write_b128 v1, v[28:31] offset:{XL}")
    if upre and not wpre:
        srd(20, 50, 448*3584)
        a(f"v_mul_u32_u24 v3, 3584, v0\ns_mul_i32 s30, s5, {56*3584}\ns_lshl_b32 s31, s7, 7\ns_add_u32 s30, s30, s31\nbuffer_load_dword v24, v3, s[20:23], s30 offen")
    a("s_mov_b32 exec_hi, -1\nL_c_nomodg:")
    stamp(6)
    if diag: a("s_waitcnt lgkmcnt(0)\ns_mov_b32 s83, s92")
    a("L_c_skip:")
    a(f"""s_mul_i32 s30, s5, {28*1792}
    s_lshl_b32 s31, s7, 6
    s_add_u32 s30, s30, s31
    s_add_u32 s68, s30, {PD_OFF}
    s_add_u32 s69, s68, {2*1792}
    s_add_u32 s70, s68, {4*1792}
    s_add_u32 s71, s68, {6*1792}
    v_lshrrev_b32 v3, 4, v0
    v_mul_u32_u24 v3, {7*1792}, v3
    v_and_b32 v4, 15, v0
    v_lshl_add_u32 v8, v4, 2, v3
    s_lshl_b32 s30, s7, 4
    v_add_u32 v9, s30, v4
    v_lshlrev_b32 v10, 2, v9
    v_lshlrev_b32 v9, 1, v9
    s_mul_i32 s72, s5, 896""")
    srd(96, 58, 7168)
    a("s_cmp_eq_u32 s28, 2\ns_cbranch_scc1 L_st_end")
    if late:
        srd(16, 48, 448*3584); block_voff("v11", 3584)
        a(f"s_lshl_b32 s34, s7, 7\ns_mov_b32 s35, {GU}")
        lds_spin(VISS, 8)
        for w in range(7):
            dma_block("s35", "v11", 16, "s34", 3584)
            if w < 6: a(f"s_add_u32 s34, s34, {57*3584}\ns_add_u32 s35, s35, 8192")
        a("s_waitcnt vmcnt(0)")
    a("s_waitcnt lgkmcnt(0)\ns_barrier\ns_barrier")
    a(f"ds_read_b32 v20, v10 offset:{X1L}\nds_read_u16 v21, v9 offset:{MODL+2688}\ns_waitcnt lgkmcnt(0)\nv_lshlrev_b32 v21, 16, v21\ns_barrier")
    stamp(5)
    a("L_final:\ns_mov_b32 s33, 0")
    L = a.label("pd"); D = a.label("pdd")
    a(f"{L}:")
    guard("\n".join(f"buffer_load_dword v{12+k}, v8, {WS}, s{68+(k>>1)} offen offset:{(k&1)*1792} sc1" for k in range(7)))
    a("s_waitcnt vmcnt(0)")
    check(range(12, 19), "v3")
    a(f"s_cbranch_vccz {D}\ns_add_u32 s33, s33, 1\ns_cmp_lt_u32 s33, {SPIN_MAX}\ns_cbranch_scc1 {L}\n{D}:")
    stamp(6)
    a("v_add_f32 v12, v12, v13\nv_add_f32 v14, v14, v15\nv_add_f32 v16, v16, v17\nv_add_f32 v12, v12, v18\nv_add_f32 v14, v14, v16\nv_add_f32 v12, v12, v14")
    xrow_reduce("v_add_f32", "v12", "v3")
    round1("v12"); a("v_mul_f32 v12, v12, v21"); round1("v12"); a("v_add_f32 v12, v12, v20\nv_cvt_pk_bf16_f32 v12, v12, v12")
    guard("s_mov_b64 exec, 0xffff\nbuffer_store_short v12, v9, s[96:99], s72 offen " + outpol)
    if dry: a("s_cbranch_execz L_dry3")
    if diag:
        a("s_mov_b64 exec, -1")
        stamp(7)
        a(f"""L_finish:
        s_waitcnt lgkmcnt(0)
        s_mov_b64 exec, -1
        v_mov_b32 v4, 0""")
        for i in range(8): a(f"v_writelane_b32 v4, s{80+2*i}, {i}")
        a("s_cmp_eq_u32 s81, 15\ns_cselect_b32 s30, s83, s80\nv_writelane_b32 v4, s30, 0")
        if 'hst' in exp: a("v_writelane_b32 v4, s76, 3\nv_writelane_b32 v4, s77, 4\nv_writelane_b32 v4, s83, 7")
        if 'rtt' in exp: a("s_cselect_b32 s30, s76, s82\nv_writelane_b32 v4, s30, 1\ns_cselect_b32 s30, s77, s86\nv_writelane_b32 v4, s30, 3")
        a(f"""s_getreg_b32 s30, hwreg(HW_REG_HW_ID)
        v_lshrrev_b32 v3, 6, v0
        s_lshl_b32 s30, s2, 9
        v_lshlrev_b32 v3, 2, v0
        s_lshl_b32 s31, s81, 5
        s_add_u32 s30, s30, s31
        s_add_u32 s30, s30, {TS_OFF}
        s_mov_b64 exec, 0xff
        buffer_store_dword v4, v3, {WS}, s30 offen""")
        if dbg:
            a(f"""s_mov_b64 exec, 1
            s_not_b32 s30, s80
            v_mov_b32 v5, s30
            global_atomic_umax v2, v5, s[60:61] sc1
            v_mov_b32 v5, s80
            global_atomic_umax v2, v5, s[60:61] offset:4 sc1
            s_cmp_eq_u32 s81, 15
            s_cbranch_scc0 L_d1
            s_mov_b64 exec, 0xfc
            global_atomic_umax v3, v4, s[60:61] sc1
            L_d1:
            s_cmp_eq_u32 s81, 0
            s_cbranch_scc0 L_d2
            s_mov_b64 exec, 0x3e
            global_atomic_umax v3, v4, s[60:61] offset:32 sc1
            L_d2:
            s_cmp_eq_u32 s81, 8
            s_cbranch_scc0 L_end
            s_mov_b64 exec, 0x18
            global_atomic_umax v3, v4, s[60:61] offset:44 sc1
            s_mov_b64 exec, 0x4
            global_atomic_umax v3, v4, s[60:61] offset:24 sc1""")
    a("L_end:\ns_endpgm")
    body = a.text()
    if diag: body = body.replace("    s_and_b32 s4, s2, 7\n", "    s_waitcnt lgkmcnt(0)\n    s_mov_b32 s81, s3\n    s_and_b32 s4, s2, 7\n", 1)
    hdr = open("adaLN_cond__sliding_block_cached__glu_gated_glu__decode.s.ref").read().split("; Override launch")[0]
    return (hdr + f"; @launch grid=(256,1,1) block=(1024,1,1) lds={LDS_BYTES}\n.amdgcn_target \"amdgcn-amd-amdhsa--gfx950\"\n.text\n.globl {NAME}\n.p2align 8\n.type {NAME},@function\n{NAME}:\n"
            + body + f""".section .rodata,"a"
.p2align 6
.amdhsa_kernel {NAME}
  .amdhsa_next_free_vgpr 128
  .amdhsa_next_free_sgpr 102
  .amdhsa_accum_offset 128
  .amdhsa_group_segment_fixed_size 0
  .amdhsa_kernarg_size 112
  .amdhsa_user_sgpr_count 2
  .amdhsa_user_sgpr_kernarg_segment_ptr 1
  .amdhsa_system_sgpr_workgroup_id_x 1
  .amdhsa_float_denorm_mode_32 3
.end_amdhsa_kernel
""")

if __name__ == "__main__":
    kw = eval("dict(%s)" % (sys.argv[2] if len(sys.argv) > 2 else ""))
    open(sys.argv[1], "w").write(gen(**kw))
```
